```python
import torch

def _softmax(x, axis=-1):
    return torch.softmax(x, dim=axis)
def _gelu(x):
    return torch.nn.functional.gelu(x, approximate="tanh")
def _silu(x):
    return torch.nn.functional.silu(x)
def _sigmoid(x):
    return torch.sigmoid(x)
def _layernorm(x, axis=-1, eps=1e-5):
    m = x.mean(dim=axis, keepdim=True)
    v = x.var(dim=axis, keepdim=True, unbiased=False)
    return (x - m) / torch.sqrt(v + eps)
def _scatter_add(tgt, idx, src, axis=0):
    return tgt.clone().index_add_(axis, idx, src)
def _segment_sum(src, seg, n):
    out = torch.zeros((n,) + src.shape[1:], dtype=src.dtype)
    return out.index_add_(0, seg, src)
def _pad(x, pw):
    flat = tuple(v for pair in reversed(pw) for v in pair)
    return torch.nn.functional.pad(x, flat)

kernel_name = 'sequential_preLN__ssm_conv_s4d__glu_gated_swiglu__prompt'

def setup_inputs():

    _w = (lambda a: (lambda t: t.to(torch.bfloat16) if t.is_floating_point() else t)(torch.as_tensor(a)))
    def _A_setup():
        Bsz, L, D, N = 1, 2048, 448, 256
        return {
            "u": _w((lambda *s: torch.randn(*s, dtype=torch.bfloat16) * 0.05)(Bsz, L, D)),
            "log_A_real": _w((lambda *s: torch.randn(*s, dtype=torch.bfloat16) * 6.4)(D, N) * 0.5),
            "A_imag": _w((lambda *s: torch.randn(*s, dtype=torch.bfloat16) * 0.05)(D, N) * 3.14),
            "C_real": _w((lambda *s: torch.randn(*s, dtype=torch.bfloat16) * 0.05)(D, N) / N ** 0.5),
            "C_imag": _w((lambda *s: torch.randn(*s, dtype=torch.bfloat16) * 0.05)(D, N) / N ** 0.5),
            "log_dt": _w((lambda *s: torch.randn(*s, dtype=torch.bfloat16) * 0.05)(D) * 0.5 - 4.0),
            "D_skip": _w((lambda *s: torch.randn(*s, dtype=torch.bfloat16) * 0.05)(D)),
        }
    _A_in = _A_setup()

    def _B_setup():
        B, S, D, F = 1, 2048, 448, 1792
        return {
            "x": _w((lambda *s: torch.randn(*s, dtype=torch.bfloat16) * 0.05)(B, S, D)),
            "w1": _w((lambda *s: torch.randn(*s, dtype=torch.bfloat16) * 0.4)(D, F) * (2.0 / D) ** 0.5),
            "w3": _w((lambda *s: torch.randn(*s, dtype=torch.bfloat16) * 0.4)(D, F) * (2.0 / D) ** 0.5),
            "w2": _w((lambda *s: torch.randn(*s, dtype=torch.bfloat16) * 0.4)(F, D) * (2.0 / F) ** 0.5),
        }
    _B_in = _B_setup()

    return {
        "A_u": _A_in["u"],
        "A_log_A_real": _A_in["log_A_real"],
        "A_A_imag": _A_in["A_imag"],
        "A_C_real": _A_in["C_real"],
        "A_C_imag": _A_in["C_imag"],
        "A_log_dt": _A_in["log_dt"],
        "A_D_skip": _A_in["D_skip"],
        "B_x": _B_in["x"],
        "B_w1": _B_in["w1"],
        "B_w3": _B_in["w3"],
        "B_w2": _B_in["w2"],
    }

def reference(A_u, A_log_A_real, A_A_imag, A_C_real, A_C_imag, A_log_dt, A_D_skip, B_x, B_w1, B_w3, B_w2):
    def _A_ref(u, log_A_real, A_imag, C_real, C_imag, log_dt, D_skip):
        L = u.shape[1]
        dt = torch.exp(log_dt)
        A = -torch.exp(log_A_real) + 1j * A_imag
        C = (C_real + 1j * C_imag) * dt[:, None]
        pos = (lambda x, dt: x.to(dt))(torch.arange(L), log_dt.dtype)
        P = torch.exp((A * dt[:, None])[:, :, None] * pos[None, None, :])
        K = 2.0 * torch.einsum("dn,dnl->dl", C, P).real
        L2 = 2 * L
        u_t = (lambda x, *d: x.permute(*d))(u, 0, 2, 1)
        Kf = (lambda x, *a, **k: torch.fft.rfft(x.float(), *a, **k))(K, L2)
        Uf = (lambda x, *a, **k: torch.fft.rfft(x.float(), *a, **k))(u_t, L2)
        y = (lambda x, *a, **k: torch.fft.irfft(x, *a, **k).to(torch.bfloat16))(Uf * Kf[None, :, :], L2)[:, :, :L]
        y = (lambda x, *d: x.permute(*d))(y, 0, 2, 1)
        return y + u * D_skip[None, None, :]

    def _B_ref(x, w1, w3, w2):
        gate = torch.einsum("bsd,df->bsf", x, w1)
        up = torch.einsum("bsd,df->bsf", x, w3)
        h = _silu(gate) * up
        out = torch.einsum("bsf,fd->bsd", h, w2)
        return out

    x = A_u
    h = x + _A_ref(_layernorm(x, axis=-1), A_log_A_real, A_A_imag, A_C_real, A_C_imag, A_log_dt, A_D_skip)
    h2 = h + _B_ref(_layernorm(h, axis=-1), B_w1, B_w3, B_w2)
    return h2
```

```python
import re

TRANS = ("v_exp_f32", "v_log_f32", "v_rcp_f32", "v_rsq_f32", "v_sqrt_f32", "v_sin_f32", "v_cos_f32")
RMW_VALU = ("v_fmac_f32", "v_dot2c_f32_bf16", "v_pk_fmac", "v_fmamk", "v_writelane_b32")

_reg_re = re.compile(r"^(-|\|)?(abs\()?([vas])(\d+|\[(\d+):(\d+)\])\)?\|?$")

def regs_of(tok):
    tok = tok.strip()
    if tok in ("vcc", "vcc_lo", "vcc_hi"): return {("s", "vcc")}
    if tok == "exec": return {("s", "exec")}
    if tok == "m0": return {("s", "m0")}
    m = _reg_re.match(tok)
    if not m: return set()
    k = m.group(3)
    if m.group(5) is not None:
        return {(k, i) for i in range(int(m.group(5)), int(m.group(6)) + 1)}
    return {(k, int(m.group(4)))}

class Ins:
    __slots__ = ("text", "op", "ops", "mods", "kind", "wr", "rd", "tag", "nbytes")
    def __init__(self, text, tag=None):
        self.text = text; self.tag = tag
        t = text.strip()
        parts = t.split(None, 1)
        self.op = parts[0]
        rest = parts[1] if len(parts) > 1 else ""
        toks = [x.strip() for x in rest.split(",")] if rest else []
        mods = ""
        if toks:
            last = toks[-1].split(None, 1)
            toks[-1] = last[0]
            if len(last) > 1: mods = last[1]
        m = re.search(r"\s(op_sel|op_sel_hi|neg_lo|neg_hi|offset|offset0|offset1|offen|lds|sc0|sc1|nt|row_|quad_perm|wave_|bound_ctrl|dst_sel|bank_mask|off\b|cbsz|abid|blgp)", " " + rest)
        if m:
            cut = m.start()
            main = (" " + rest)[:cut]; mods = (" " + rest)[cut:]
            toks = [x.strip() for x in main.split(",") if x.strip()]
        self.ops = toks; self.mods = mods
        self.classify()
    def classify(self):
        op = self.op; o = self.ops
        R = lambda i: regs_of(o[i]) if i < len(o) else set()
        wr = set(); rd = set()
        if op.startswith("v_mfma"):
            kind = "mfma"; wr = R(0); rd = R(1) | R(2) | R(3)
        elif op.startswith("v_cmp"):
            kind = "valu"; wr = R(0); rd = R(1) | R(2)
            if op.startswith("v_cmpx"): wr |= {("s", "exec")}
        elif op.startswith("v_readlane") or op.startswith("v_readfirstlane"):
            kind = "valu"; wr = R(0); rd = R(1) | R(2)
        elif op.startswith("v_permlane"):
            kind = "valu"; wr = R(0) | R(1); rd = R(0) | R(1)
        elif op.startswith("v_"):
            kind = "valu"; wr = R(0)
            start = 1
            if op in ("v_add_co_u32", "v_addc_co_u32", "v_sub_co_u32", "v_mad_u64_u32"):
                wr |= R(1); start = 2
            for i in range(start, len(o)): rd |= R(i)
            if op.startswith(RMW_VALU) or "dst_unused:UNUSED_PRESERVE" in self.mods or "_dpp" in op:
                rd |= R(0)
            if op.startswith("v_cndmask") and len(o) == 3: rd |= {("s", "vcc")}
        elif op.startswith("ds_read") or op.startswith("ds_bpermute") or op.startswith("ds_swizzle"):
            kind = "dsr"; wr = R(0)
            for i in range(1, len(o)): rd |= R(i)
        elif op.startswith("ds_write"):
            kind = "dsw"
            for i in range(len(o)): rd |= R(i)
        elif op.startswith("buffer_load") or op.startswith("global_load"):
            if " lds" in (" " + self.mods) or "_lds_" in op:
                kind = "dma"
                for i in range(len(o)): rd |= R(i)
                rd |= {("s", "m0")}
            else:
                kind = "vml"; wr = R(0)
                for i in range(1, len(o)): rd |= R(i)
        elif op.startswith("buffer_store") or op.startswith("global_store"):
            kind = "vms"
            for i in range(len(o)): rd |= R(i)
        elif op.startswith("buffer_atomic") or op.startswith("global_atomic"):
            kind = "vma"
            if "sc0" in self.mods:
                wr = R(0)
                for i in range(1, len(o)): rd |= R(i)
            else:
                for i in range(len(o)): rd |= R(i)
        elif op.startswith("s_load") or op.startswith("s_buffer_load") or op.startswith("s_memtime") or op.startswith("s_memrealtime"):
            kind = "smem"; wr = R(0)
            for i in range(1, len(o)): rd |= R(i)
        elif op == "s_waitcnt": kind = "wait"
        elif op == "s_nop": kind = "nop"
        elif op in ("s_barrier", "s_endpgm", "s_sleep", "s_setprio"): kind = "misc"
        elif op.startswith("s_cbranch") or op == "s_branch": kind = "branch"
        elif op.startswith("s_cmp"):
            kind = "salu"
            for i in range(len(o)): rd |= R(i)
        elif op.startswith("s_"):
            kind = "salu"; wr = R(0)
            for i in range(1, len(o)): rd |= R(i)
            if "saveexec" in op: wr |= {("s", "exec")}
        else:
            raise ValueError("unknown instruction: " + self.text)
        self.kind = kind; self.wr = wr; self.rd = rd
    def store_width(self):
        if self.kind in ("vms",) and (self.op.endswith("x4") or self.op.endswith("x3")): return True
        return False
    def mfma_passes(self):
        if "32x32x16" in self.op: return 8
        if "16x16x32" in self.op: return 4
        raise ValueError(self.op)

class Kern:
    def __init__(self, name):
        self.name = name
        self.out = []
        self.vmq = []
        self.lgq = []
        self.hist = []
        self.uid = 0
        self.maxv = 0; self.maxa = -1; self.maxs = 0
    def raw(self, s): self.out.append(s)
    def comment(self, s): self.out.append("    ; " + s)
    def label(self, name):
        self.out.append(name + ":")
        self.hist = []
    def newlabel(self, base="L"):
        self.uid += 1
        return f"{self.name}_{base}{self.uid}"
    def _wait(self, vm=None, lg=None):
        parts = []
        if vm is not None: parts.append(f"vmcnt({min(vm,63)})")
        if lg is not None: parts.append(f"lgkmcnt({min(lg,15)})")
        if not parts: return
        self._push(Ins("s_waitcnt " + " ".join(parts)))
        if vm is not None:
            self.vmq = self.vmq[len(self.vmq) - vm:] if vm > 0 else []
        if lg is not None:
            self.lgq = self.lgq[len(self.lgq) - lg:] if lg > 0 else []
    def wait_vm(self, n=0):
        if len(self.vmq) > n: self._wait(vm=n)
    def wait_lg(self, n=0):
        if len(self.lgq) > n: self._wait(lg=n)
    def wait_all(self):
        self._push(Ins("s_waitcnt vmcnt(0) lgkmcnt(0)")); self.vmq = []; self.lgq = []
    def wait_tag(self, tag):
        idx = [i for i, (r, t) in enumerate(self.vmq) if t == tag]
        if idx:
            n = len(self.vmq) - 1 - max(idx)
            self._wait(vm=n)
    def wait_lgtag(self, tag):
        idx = [i for i, (r, t) in enumerate(self.lgq) if t == tag]
        if idx:
            n = len(self.lgq) - 1 - max(idx)
            self._wait(lg=n)
    def fence(self):
        vm = None; lg = None
        if self.vmq: vm = 0
        if self.lgq: lg = 0
        self._wait(vm, lg)
    def forget(self):
        self.vmq = []; self.lgq = []
    def _auto_wait(self, ins):
        touched = ins.rd | ins.wr
        vm = None; lg = None
        for i, (r, t) in enumerate(self.vmq):
            if r & touched:
                n = len(self.vmq) - 1 - i
                vm = n if vm is None else min(vm, n)
        for i, (r, t) in enumerate(self.lgq):
            if r & touched:
                n = len(self.lgq) - 1 - i
                lg = n if lg is None else min(lg, n)
        if vm is not None and vm >= 63: vm = 62 if False else vm
        self._wait(vm, lg)
    def _need_nops(self, ins):
        need = 0
        dist = 0
        for p in reversed(self.hist):
            req = 0
            vw = {r for r in p.wr if r[0] in "va"}
            sw = {r for r in p.wr if r[0] == "s"}
            if p.kind == "valu":
                istrans = p.op.startswith(TRANS)
                if ins.kind == "mfma" and (vw & ins.rd): req = max(req, 2)
                if ins.kind == "mfma" and ("s", "exec") in p.wr: req = max(req, 4)
                if ins.kind == "valu":
                    if istrans and (vw & (ins.rd | ins.wr)) and not ins.op.startswith(TRANS): req = max(req, 1)
                    if istrans and (vw & ins.rd): req = max(req, 1)
                    if ("_dpp" in ins.op) and (vw & ins.rd): req = max(req, 2)
                    if ins.op.startswith("v_permlane") and (vw & ins.rd): req = max(req, 2)
                    if (ins.op.startswith("v_readlane") or ins.op.startswith("v_readfirstlane")) and (vw & ins.rd): req = max(req, 1)
                    if sw & ins.rd:
                        req = max(req, 2)
                        if ins.op.startswith(("v_readlane", "v_writelane")): req = max(req, 4)
                    if p.op.startswith("v_dot2") and (vw & (ins.rd | ins.wr)):
                        same = (p.op == ins.op) and not (vw & (regs_of(ins.ops[1]) | regs_of(ins.ops[2])))
                        if not same: req = max(req, 3)
                    if ("sdwa" in p.op or "op_sel" in p.mods and p.op.startswith("v_cvt")) and (vw & ins.rd): req = max(req, 1)
                if ins.kind in ("vml", "vms", "vma", "dma", "dsr", "dsw"):
                    if sw & ins.rd: req = max(req, 5)
                    if istrans and (vw & ins.rd): req = max(req, 1)
                    if p.op.startswith("v_dot2") and (vw & ins.rd): req = max(req, 3)
                if ins.kind in ("salu", "branch", "smem") and (sw & ins.rd): req = max(req, 4)
                if ins.kind == "branch" and (("s", "vcc") in p.wr or ("s", "exec") in p.wr): req = max(req, 5)
            elif p.kind == "mfma":
                ps = p.mfma_passes()
                D = p.wr
                raw_valu = {4: 8, 8: 12}[ps]; ovl = {4: 6, 8: 10}[ps]; war = {4: 3, 8: 7}[ps]
                if ins.kind == "mfma":
                    C = regs_of(ins.ops[3]); AB = regs_of(ins.ops[1]) | regs_of(ins.ops[2])
                    if D & AB: req = max(req, raw_valu)
                    if D & C:
                        if C == D and ins.mfma_passes() == ps: pass
                        else: req = max(req, ovl)
                    if (D & ins.wr) and not (C == D): req = max(req, ovl)
                elif ins.kind in ("valu", "dsr", "dsw", "vml", "vms", "vma", "dma"):
                    if D & (ins.rd | ins.wr): req = max(req, raw_valu)
                    if ins.kind == "valu":
                        Cp = regs_of(p.ops[3])
                        if Cp & ins.wr: req = max(req, war)
            elif p.kind == "vms" and p.store_width():
                data = regs_of(p.ops[0]) if p.op.startswith("buffer") else regs_of(p.ops[1])
                if ins.kind == "valu" and (data & ins.wr): req = max(req, 2)
                elif data & ins.wr: req = max(req, 1)
            elif p.kind == "salu":
                if ("s", "m0") in p.wr and ins.kind == "dma": req = max(req, 1)
            need = max(need, req - dist)
            dist += self._states(p)
            if dist > 24: break
        return need
    def _states(self, p):
        if p.kind == "nop": return int(p.ops[0]) + 1
        return 1
    def _push(self, ins):
        self.out.append(ins)
        self.hist.append(ins)
        if len(self.hist) > 40: self.hist = self.hist[-40:]
        for (k, i) in ins.wr | ins.rd:
            if isinstance(i, int):
                if k == "v": self.maxv = max(self.maxv, i)
                elif k == "a": self.maxa = max(self.maxa, i)
                elif k == "s": self.maxs = max(self.maxs, i)
    def nop(self, n):
        while n > 0:
            c = min(n, 16)
            self._push(Ins(f"s_nop {c-1}")); n -= c
    def I(self, text, tag=None):
        ins = Ins(text, tag)
        if ins.kind not in ("wait", "nop", "misc", "branch"):
            self._auto_wait(ins)
        n = self._need_nops(ins)
        if n > 0: self.nop(n)
        self._push(ins)
        if ins.kind in ("vml", "vma"): self.vmq.append((set(ins.wr), tag))
        elif ins.kind in ("vms", "dma"): self.vmq.append((set(), tag))
        elif ins.kind == "dsr": self.lgq.append((set(ins.wr), tag))
        elif ins.kind == "dsw": self.lgq.append((set(), tag))
        elif ins.kind == "smem":
            assert not self.lgq, "smem mixed with lds ops"
        if len(self.vmq) > 63: self.vmq = self.vmq[-63:]
        if len(self.lgq) > 15: self.lgq = self.lgq[-15:]
        return ins
    def __call__(self, text, tag=None):
        for l in text.split("\n"):
            l = l.split(";")[0].strip()
            if l: self.I(l, tag)
    def smem_wait(self):
        self._push(Ins("s_waitcnt lgkmcnt(0)")); self.lgq = []
    def barrier(self):
        self.I("s_barrier")
    def branch(self, text):
        self.I(text)
        self.hist = []
    def text(self):
        L = []
        for x in self.out:
            L.append(x if isinstance(x, str) else "    " + x.text)
        return "\n".join(L)
    def count(self):
        return sum(1 for x in self.out if not isinstance(x, str))

def build_file(header_lines, launches, kernels):
    out = list(header_lines)
    for (n, g, b, l) in launches:
        out.append(f"; @launch kernel={n} grid=({g},1,1) block=({b},1,1) lds={l}")
    out.append('.amdgcn_target "amdgcn-amd-amdhsa--gfx950"')
    out.append(".text")
    for (k, vg, acc, sg) in kernels:
        out.append(f".globl {k.name}\n.p2align 8\n.type {k.name},@function\n{k.name}:")
        out.append(k.text())
    out.append('.section .rodata,"a"')
    for (k, vg, acc, sg) in kernels:
        out.append(".p2align 6")
        out.append(f".amdhsa_kernel {k.name}")
        out.append(f"  .amdhsa_next_free_vgpr {vg}")
        out.append(f"  .amdhsa_next_free_sgpr {sg}")
        out.append(f"  .amdhsa_accum_offset {acc}")
        out.append("  .amdhsa_group_segment_fixed_size 0")
        out.append("  .amdhsa_kernarg_size 112")
        out.append("  .amdhsa_user_sgpr_count 2")
        out.append("  .amdhsa_user_sgpr_kernarg_segment_ptr 1")
        out.append("  .amdhsa_system_sgpr_workgroup_id_x 1")
        out.append(".end_amdhsa_kernel")
    return "\n".join(out) + "\n"
```

```python
from asmlib import *

D = 448; L = 2048; F = 1792; NM = 256
NWG = 224
WS_XU = 0
WS_HT = WS_XU + D * L * 4
WS_WA1 = WS_HT + D * L * 2
WS_WA2 = WS_WA1 + 56 * 28 * 2 * 1024
WS_HH = WS_WA2 + 14 * 112 * 1024
WS_DBG = WS_HH + 64 * 112 * 1024
WS_END = WS_DBG + (4 << 20)

S_WG = 2
S_U, S_LOGA, S_AIM, S_CRE, S_CIM, S_LOGDT, S_DSK, S_BX = 4, 6, 8, 10, 12, 14, 16, 18
S_W1, S_W3, S_W2, S_OUT, S_DBGP, S_WS = 20, 22, 24, 26, 28, 30
S_WAVE = 3
SRD_WS = 32
SRD_A = 36
SRD_B = 40
SRD_C = 44
SRD_D = 48
S_T = 52

def prologue(k, nwg=NWG):
    done = k.name + "_done"
    k(f"s_cmp_ge_u32 s{S_WG}, {nwg}")
    k.branch(f"s_cbranch_scc1 {done}")
    k("s_load_dwordx16 s[4:19], s[0:1], 0")
    k("s_load_dwordx8 s[20:27], s[0:1], 64")
    k("s_load_dwordx4 s[28:31], s[0:1], 96")
    k("v_lshrrev_b32 v1, 6, v0")
    k(f"v_readfirstlane_b32 s{S_WAVE}, v1")
    k("v_and_b32 v1, 63, v0")
    k.smem_wait()
    srd(k, SRD_WS, S_WS, WS_END)
    return done

def srd(k, dst, ptr, size, off=0):
    if off:
        k(f"s_add_u32 s{dst}, s{ptr}, {off}")
        k(f"s_addc_u32 s{dst+1}, s{ptr+1}, 0")
    else:
        k(f"s_mov_b32 s{dst}, s{ptr}")
        k(f"s_mov_b32 s{dst+1}, s{ptr+1}")
    k(f"s_mov_b32 s{dst+2}, {size}")
    k(f"s_mov_b32 s{dst+3}, 0x20000")

def S(i, n=1):
    return f"s{i}" if n == 1 else f"s[{i}:{i+n-1}]"
def V(i, n=1):
    return f"v{i}" if n == 1 else f"v[{i}:{i+n-1}]"
def A(i, n=1):
    return f"a{i}" if n == 1 else f"a[{i}:{i+n-1}]"

def f32bits(x):
    import struct
    return "0x%08x" % struct.unpack("<I", struct.pack("<f", x))[0]
```

```python
from common import *
import math

G1_LDS_STATS = 114688
G1_LDS = G1_LDS_STATS + 1024
G2_HT = 65536
G2_LDS = G2_HT + 8192

def decode_wg(k, sT):
    k(f"s_and_b32 s{sT}, s{S_WG}, 3")
    k(f"s_bfe_u32 s{sT+1}, s{S_WG}, 0x10002")
    k(f"s_bfe_u32 s{sT+2}, s{S_WG}, 0x20003")
    k(f"s_lshr_b32 s{sT+3}, s{S_WG}, 5")

def emit_gemm1(k, ld="", st=""):
    sT = S_T; w = S_WAVE
    decode_wg(k, sT)
    S_TB, S_FB, S_PHI = sT + 4, sT + 5, sT + 6
    k(f"s_lshl_b32 s{S_TB}, s{sT}, 2"); k(f"s_add_u32 s{S_TB}, s{S_TB}, s{sT+2}")
    k(f"s_mul_i32 s{S_FB}, s{sT+1}, 7"); k(f"s_add_u32 s{S_FB}, s{S_FB}, s{sT+3}")
    k(f"s_lshl_b32 s{S_PHI}, s{S_FB}, 2"); k(f"s_add_u32 s{S_PHI}, s{S_PHI}, s{w}")
    AD = 8
    ADS = 16
    ONE = 20
    BR = 24
    SR = 40
    SUMV, SQV = 48, 49
    ST = 50
    ACC = 64
    CS = 128
    TMP = 160
    k("v_lshlrev_b32 v2, 4, v1")
    k("v_lshrrev_b32 v3, 4, v1")
    k("v_bfe_u32 v4, v1, 2, 2")
    k("v_xor_b32 v4, v4, v3")
    k("v_lshlrev_b32 v4, 6, v4")
    k("v_lshl_add_u32 v4, v3, 12, v4")
    k("v_and_b32 v3, 3, v1")
    k("v_lshl_add_u32 v4, v3, 4, v4")
    S_WB, S_HB, S_M0 = sT + 7, sT + 8, sT + 9
    k(f"s_mul_i32 s{S_WB}, s{S_PHI}, 57344"); k(f"s_add_u32 s{S_WB}, s{S_WB}, {WS_WA1}")
    k(f"s_lshl_b32 s{S_HB}, s{w}, 14"); k(f"s_lshl_b32 s{sT+10}, s{S_TB}, 8")
    k(f"s_add_u32 s{S_HB}, s{S_HB}, s{sT+10}"); k(f"s_add_u32 s{S_HB}, s{S_HB}, {WS_HT}")
    k(f"s_lshl_b32 s{S_M0}, s{w}, 10")
    for s in range(28):
        k(f"s_mov_b32 m0, s{S_M0}")
        k(f"buffer_load_dwordx4 v4, {S(SRD_WS,4)}, s{S_HB} offen lds{ld}", tag=("ch", s // 7))
        k(f"s_add_u32 s{S_M0}, s{S_M0}, 4096")
        k(f"s_add_u32 s{S_HB}, s{S_HB}, 65536")
        for gu in range(2):
            f = 2 * s + gu
            k(f"buffer_load_dwordx4 {A(4*f,4)}, v2, {S(SRD_WS,4)}, s{S_WB} offen offset:{(f%4)*1024}", tag=("ch", s // 7))
            if f % 4 == 3: k(f"s_add_u32 s{S_WB}, s{S_WB}, 4096")
    k("v_and_b32 v5, 15, v1"); k("v_lshrrev_b32 v5, 2, v5")
    k("v_lshrrev_b32 v6, 5, v1")
    k("v_lshl_add_u32 v7, v6, 3, v5")
    k("v_lshlrev_b32 v7, 8, v7")
    k(f"v_bfe_u32 v{TMP}, v1, 4, 1"); k(f"v_lshl_add_u32 v7, v{TMP}, 5, v7")
    k(f"v_and_b32 v{TMP}, 3, v1"); k(f"v_lshl_add_u32 v7, v{TMP}, 3, v7")
    for tau in range(4):
        k(f"v_xor_b32 v{TMP}, {tau}, v5")
        k(f"v_lshl_add_u32 v{AD+tau}, v{TMP}, 6, v7")
        k(f"v_add_u32 v{AD+4+tau}, 0x10000, v{AD+tau}")
    k(f"v_xor_b32 v{TMP}, s{w}, v5")
    k(f"v_lshl_add_u32 v{ADS}, v{TMP}, 6, v7")
    k(f"v_add_u32 v{ADS+1}, 0x10000, v{ADS}")
    for i in range(4): k(f"v_mov_b32 v{ONE+i}, 0x3f803f80")
    k(f"v_mov_b32 v{SUMV}, 0"); k(f"v_mov_b32 v{SQV}, 0")
    def brd(dst, base_lo, s):
        a = base_lo if s < 16 else base_lo + (4 if base_lo != ADS else 1)
        o = 4096 * (s % 16)
        return [f"ds_read_b64_tr_b16 {V(dst,2)}, v{a} offset:{o}", f"ds_read_b64_tr_b16 {V(dst+2,2)}, v{a} offset:{o+1024}"]
    def epilogue(tau, acc):
        o = []
        G = acc; U = acc + 16
        o.append(f"ds_read_b64 {V(ST,2)}, v{TMP+30} offset:{tau*256}")
        o.append(f"v_mul_f32 v{ST+2}, v{ST+1}, v{ST+1}")
        o.append(f"v_rcp_f32 v{ST+4}, v{ST+1}")
        o.append(f"v_mul_f32 v{ST+4}, {f32bits(-math.log2(math.e))}, v{ST+4}")
        OUT = TMP + 16
        for p in range(8):
            t = TMP + 8 * (p % 2)
            o.append(f"v_pk_fma_f32 {V(G+2*p,2)}, {V(ST,2)}, {V(CS+2*p,2)}, {V(G+2*p,2)} op_sel_hi:[0,1,1] neg_lo:[1,0,0] neg_hi:[1,0,0]")
            o.append(f"v_pk_fma_f32 {V(U+2*p,2)}, {V(ST,2)}, {V(CS+16+2*p,2)}, {V(U+2*p,2)} op_sel_hi:[0,1,1] neg_lo:[1,0,0] neg_hi:[1,0,0]")
            o.append(f"v_pk_mul_f32 {V(t,2)}, {V(G+2*p,2)}, {V(ST+4,2)} op_sel_hi:[1,0]")
            o.append(f"v_exp_f32 v{t}, v{t}")
            o.append(f"v_exp_f32 v{t+1}, v{t+1}")
            o.append(f"v_pk_mul_f32 {V(t+2,2)}, {V(G+2*p,2)}, {V(U+2*p,2)}")
            o.append(f"v_pk_fma_f32 {V(t,2)}, {V(t,2)}, {V(ST+2,2)}, {V(ST+2,2)} op_sel_hi:[1,0,0]")
            o.append(f"v_rcp_f32 v{t}, v{t}")
            o.append(f"v_rcp_f32 v{t+1}, v{t+1}")
            o.append(f"v_pk_mul_f32 {V(t+2,2)}, {V(t+2,2)}, {V(t,2)}")
            o.append(f"v_cvt_pk_bf16_f32 v{OUT+p}, v{t+2}, v{t+3}")
        o.append(f"s_lshl_b32 s{sT+11}, s{S_TB}, 2")
        o.append(f"s_add_u32 s{sT+11}, s{sT+11}, {tau}")
        o.append(f"s_mul_i32 s{sT+11}, s{sT+11}, 112")
        o.append(f"s_lshl_b32 s{sT+12}, s{S_PHI}, 1")
        o.append(f"s_add_u32 s{sT+11}, s{sT+11}, s{sT+12}")
        o.append(f"s_lshl_b32 s{sT+11}, s{sT+11}, 10")
        o.append(f"s_add_u32 s{sT+11}, s{sT+11}, {WS_HH}")
        for e in range(2):
            o.append(f"buffer_store_dwordx4 {V(OUT+4*e,4)}, v2, {S(SRD_WS,4)}, s{sT+11} offen offset:{e*1024}{st}")
        return o
    k(f"v_and_b32 v{TMP+30}, 31, v1"); k(f"v_lshlrev_b32 v{TMP+30}, 3, v{TMP+30}")
    k(f"v_add_u32 v{TMP+30}, {G1_LDS_STATS}, v{TMP+30}")
    for tau in range(4):
        acc = ACC + 32 * (tau & 1)
        G = acc; U = acc + 16
        PF = 3
        started = set()
        def issue(s):
            if s < 28 and s not in started:
                started.add(s)
                for l in brd(BR + 4 * (s % 4), AD + tau, s): k(l)
                if tau == 0:
                    for l in brd(SR + 4 * (s % 2), ADS, s): k(l)
        for s in range(28):
            if tau == 0 and s % 7 == 0:
                k.wait_tag(("ch", s // 7)); k.barrier()
            if tau == 0:
                lim = (s // 7) * 7 + 7
                issue(s)
                if s + 1 < lim: pass
            else:
                for ss in range(s, min(s + PF, 28)): issue(ss)
            b = V(BR + 4 * (s % 4), 4)
            k(f"v_mfma_f32_32x32x16_bf16 {V(G,16)}, {A(8*s,4)}, {b}, {V(G,16) if s else '0'}")
            k(f"v_mfma_f32_32x32x16_bf16 {V(U,16)}, {A(8*s+4,4)}, {b}, {V(U,16) if s else '0'}")
            if tau == 0:
                k(f"v_mfma_f32_32x32x16_bf16 {V(CS,16)}, {A(8*s,4)}, {V(ONE,4)}, {V(CS,16) if s else '0'}")
                k(f"v_mfma_f32_32x32x16_bf16 {V(CS+16,16)}, {A(8*s+4,4)}, {V(ONE,4)}, {V(CS+16,16) if s else '0'}")
                for i in range(4):
                    r = SR + 4 * (s % 2) + i
                    k(f"v_dot2c_f32_bf16 v{SQV}, v{r}, v{r}")
                    k(f"v_dot2c_f32_bf16 v{SUMV}, v{r}, v{ONE}")
        if tau == 0:
            t = TMP
            k(f"v_mov_b32 v{t}, v{SUMV}"); k(f"v_mov_b32 v{t+1}, v{SQV}")
            k(f"v_permlane32_swap_b32 v{SUMV}, v{t}"); k(f"v_permlane32_swap_b32 v{SQV}, v{t+1}")
            k(f"v_add_f32 v{SUMV}, v{SUMV}, v{t}"); k(f"v_add_f32 v{SQV}, v{SQV}, v{t+1}")
            inv = f32bits(1.0 / 448.0)
            k(f"v_mul_f32 v{SUMV}, {inv}, v{SUMV}"); k(f"v_mul_f32 v{SQV}, {inv}, v{SQV}")
            k(f"v_fma_f32 v{SQV}, -v{SUMV}, v{SUMV}, v{SQV}")
            k(f"v_cvt_pk_bf16_f32 v{t}, v{SUMV}, v{SQV}")
            k(f"v_lshlrev_b32 v{t+2}, 16, v{t}")
            k(f"v_and_b32 v{t+3}, 0xffff0000, v{t}")
            k(f"v_add_f32 v{t+3}, {f32bits(1e-5)}, v{t+3}")
            k(f"v_cvt_pk_bf16_f32 v{t+3}, v{t+3}, v{t+3}"); k(f"v_and_b32 v{t+3}, 0xffff0000, v{t+3}")
            k(f"v_sqrt_f32 v{t+3}, v{t+3}")
            k(f"v_cvt_pk_bf16_f32 v{t+3}, v{t+3}, v{t+3}"); k(f"v_and_b32 v{t+3}, 0xffff0000, v{t+3}")
            k(f"s_lshl_b32 s{sT+11}, s{w}, 8")
            k(f"v_add_u32 v{t+4}, s{sT+11}, v{TMP+30}")
            k(f"ds_write_b64 v{t+4}, {V(t+2,2)}")
            k.wait_lg(0); k.barrier()
        for l in epilogue(tau, acc): k(l)

def gemm1_kernel():
    k = Kern("gemm1_kernel")
    done = prologue(k)
    emit_gemm1(k)
    k.label(done); k("s_endpgm")
    return k

def emit_gemm2(k, ld="", st=""):
    sT = S_T; w = S_WAVE
    decode_wg(k, sT)
    S_TB, S_DP = sT + 4, sT + 5
    k(f"s_lshl_b32 s{S_TB}, s{sT}, 3"); k(f"s_lshl_b32 s{sT+6}, s{sT+1}, 2")
    k(f"s_add_u32 s{S_TB}, s{S_TB}, s{sT+6}"); k(f"s_add_u32 s{S_TB}, s{S_TB}, s{sT+2}")
    k(f"s_mov_b32 s{S_DP}, s{sT+3}")
    srd(k, SRD_A, S_OUT, L * D * 2)
    RING = 20
    BR = 32; ACC = 192; TMP = 8
    k("v_lshlrev_b32 v2, 4, v1")
    S_WB, S_B0, S_B1 = sT + 7, sT + 8, sT + 9
    k(f"s_mul_i32 s{S_WB}, s{S_DP}, 112"); k(f"s_mul_i32 s{sT+10}, s{w}, 28")
    k(f"s_add_u32 s{S_WB}, s{S_WB}, s{sT+10}"); k(f"s_lshl_b32 s{S_WB}, s{S_WB}, 11"); k(f"s_add_u32 s{S_WB}, s{S_WB}, {WS_WA2}")
    k(f"s_mul_i32 s{S_B0}, s{S_TB}, 224"); k(f"s_add_u32 s{S_B0}, s{S_B0}, s{sT+10}")
    k(f"s_lshl_b32 s{S_B0}, s{S_B0}, 10"); k(f"s_add_u32 s{S_B0}, s{S_B0}, {WS_HH}")
    k(f"s_add_u32 s{S_B1}, s{S_B0}, {112*1024}")
    k("v_lshrrev_b32 v3, 3, v1")
    k("v_bfe_u32 v4, v1, 2, 1")
    k("v_bfe_u32 v5, v1, 4, 1")
    k("v_xor_b32 v4, v4, v5"); k("v_lshlrev_b32 v4, 6, v4")
    k("v_lshl_add_u32 v4, v3, 12, v4")
    k("v_and_b32 v3, 3, v1"); k("v_lshl_add_u32 v4, v3, 4, v4")
    k(f"s_lshl_b32 s{sT+11}, s{S_DP}, 18")
    k(f"s_lshl_b32 s{sT+12}, s{S_TB}, 7"); k(f"s_add_u32 s{sT+11}, s{sT+11}, s{sT+12}")
    k(f"s_lshl_b32 s{sT+12}, s{w}, 16"); k(f"s_add_u32 s{sT+11}, s{sT+11}, s{sT+12}")
    k(f"s_add_u32 s{sT+11}, s{sT+11}, {WS_HT}")
    k(f"s_lshl_b32 s{sT+12}, s{w}, 11"); k(f"s_add_u32 s{sT+12}, s{sT+12}, {G2_HT}")
    for i in range(2):
        k(f"s_mov_b32 m0, s{sT+12}")
        k(f"buffer_load_dwordx4 v4, {S(SRD_WS,4)}, s{sT+11} offen lds{ld}", tag="ht")
        if i == 0:
            k(f"s_add_u32 s{sT+11}, s{sT+11}, {8*4096}"); k(f"s_add_u32 s{sT+12}, s{sT+12}, 1024")
    def loadA(i):
        for e in range(2):
            f = 2 * i + e
            k(f"buffer_load_dwordx4 {A(4*f,4)}, v2, {S(SRD_WS,4)}, s{S_WB} offen offset:{(f%4)*1024}")
            if f % 4 == 3: k(f"s_add_u32 s{S_WB}, s{S_WB}, 4096")
    def loadB(i):
        r = BR + 8 * (i % RING)
        k(f"buffer_load_dwordx4 {V(r,4)}, v2, {S(SRD_WS,4)}, s{S_B0} offen offset:{(i%4)*1024}{ld}")
        k(f"buffer_load_dwordx4 {V(r+4,4)}, v2, {S(SRD_WS,4)}, s{S_B1} offen offset:{(i%4)*1024}{ld}")
        if i % 4 == 3:
            k(f"s_add_u32 s{S_B0}, s{S_B0}, 4096"); k(f"s_add_u32 s{S_B1}, s{S_B1}, 4096")
    for i in range(28):
        loadA(i)
        if i < RING: loadB(i)
    for i in range(28):
        r = BR + 8 * (i % RING)
        for mu in range(2):
            for nu in range(2):
                acc = V(ACC + 16 * (2 * mu + nu), 16)
                k(f"v_mfma_f32_32x32x16_bf16 {acc}, {A(8*i+4*mu,4)}, {V(r+4*nu,4)}, {acc if i else '0'}")
        if i + RING < 28: loadB(i + RING)
    k(f"s_lshl_b32 s{sT+11}, s{w}, 14")
    k(f"v_add_u32 v3, s{sT+11}, v2")
    for tl in range(4):
        for q in range(4):
            k(f"ds_write_b128 v3, {V(ACC+16*tl+4*q,4)} offset:{tl*4096+q*1024}")
    k.wait_all(); k.barrier()
    k(f"s_lshl_b32 s{sT+11}, s{w}, 12")
    k(f"v_add_u32 v3, s{sT+11}, v2")
    P = BR
    for ww in range(4):
        for q in range(4):
            k(f"ds_read_b128 {V(P+16*ww+4*q,4)}, v3 offset:{ww*16384+q*1024}")
    k(f"s_lshr_b32 s{sT+12}, s{w}, 1"); k(f"s_and_b32 s{sT+13}, s{w}, 1")
    k("v_and_b32 v4, 15, v1"); k("v_lshrrev_b32 v4, 2, v4")
    k("v_lshrrev_b32 v5, 5, v1")
    k("v_lshl_add_u32 v6, v5, 2, v4")
    k("v_lshlrev_b32 v6, 7, v6")
    k("v_lshrrev_b32 v7, 1, v4")
    k(f"v_xor_b32 v7, s{sT+13}, v7"); k("v_lshl_add_u32 v6, v7, 6, v6")
    k("v_bfe_u32 v7, v1, 4, 1"); k("v_lshl_add_u32 v6, v7, 5, v6")
    k("v_and_b32 v7, 3, v1"); k("v_lshl_add_u32 v6, v7, 3, v6")
    k(f"s_lshl_b32 s{sT+14}, s{sT+12}, 12"); k(f"s_add_u32 s{sT+14}, s{sT+14}, {G2_HT}")
    k(f"v_add_u32 v6, s{sT+14}, v6")
    HV = BR + 64
    for q in range(4):
        k(f"ds_read_b64_tr_b16 {V(HV+2*q,2)}, v6 offset:{q*1024}")
    for i in range(0, 16, 2):
        k(f"v_pk_add_f32 {V(P+i,2)}, {V(P+i,2)}, {V(P+16+i,2)}")
        k(f"v_pk_add_f32 {V(P+32+i,2)}, {V(P+32+i,2)}, {V(P+48+i,2)}")
    for i in range(0, 16, 2):
        k(f"v_pk_add_f32 {V(P+i,2)}, {V(P+i,2)}, {V(P+32+i,2)}")
    O = BR + 80
    for i in range(0, 16, 2):
        t = TMP + 4 * ((i // 2) % 2)
        hv = HV + i // 2
        k(f"v_cvt_pk_bf16_f32 v{t}, v{P+i}, v{P+i+1}")
        k(f"v_lshlrev_b32 v{t+2}, 16, v{t}"); k(f"v_and_b32 v{t+3}, 0xffff0000, v{t}")
        k(f"v_lshlrev_b32 v{t}, 16, v{hv}"); k(f"v_and_b32 v{t+1}, 0xffff0000, v{hv}")
        k(f"v_pk_add_f32 {V(t,2)}, {V(t,2)}, {V(t+2,2)}")
        k(f"v_cvt_pk_bf16_f32 v{O+i//2}, v{t}, v{t+1}")
    for p in range(2):
        k(f"v_permlane32_swap_b32 v{O+4*p}, v{O+4*p+2}")
        k(f"v_permlane32_swap_b32 v{O+4*p+1}, v{O+4*p+3}")
    k("v_and_b32 v3, 31, v1"); k(f"s_movk_i32 s{sT+14}, 896"); k(f"v_mul_u32_u24 v3, s{sT+14}, v3")
    k("v_lshl_add_u32 v3, v5, 4, v3")
    k(f"s_lshl_b32 s{sT+14}, s{S_TB}, 1"); k(f"s_add_u32 s{sT+14}, s{sT+14}, s{sT+13}")
    k(f"s_mul_i32 s{sT+14}, s{sT+14}, {32*896}")
    k(f"s_lshl_b32 s{sT+15}, s{S_DP}, 7"); k(f"s_add_u32 s{sT+14}, s{sT+14}, s{sT+15}")
    k(f"s_lshl_b32 s{sT+15}, s{sT+12}, 6"); k(f"s_add_u32 s{sT+14}, s{sT+14}, s{sT+15}")
    for p in range(2):
        k(f"buffer_store_dwordx4 {V(O+4*p,4)}, v3, {S(SRD_A,4)}, s{sT+14} offen offset:{32*p}")

def gemm2_kernel():
    k = Kern("gemm2_kernel")
    done = prologue(k)
    emit_gemm2(k)
    k.label(done); k("s_endpgm")
    return k
```

```python
from common import *

LN_LDS = 0
SW_LDS = 28672
PREP_LDS = SW_LDS + 4 * 6 * 2176

def emit_ln(k, st=""):
    X = 8
    XF = 24
    OUT = 56
    SUM = 88
    T = 104
    srd(k, SRD_A, S_U, L * D * 2)
    k(f"s_lshl_b32 s{S_T}, s{S_WG}, 4")
    k(f"s_lshl_b32 s{S_T+1}, s{S_WAVE}, 2")
    k(f"s_add_u32 s{S_T+1}, s{S_T}, s{S_T+1}")
    k(f"s_mul_i32 s{S_T+2}, s{S_T+1}, 896")
    k("v_lshlrev_b32 v2, 4, v1")
    for i in range(16): k(f"v_mov_b32 v{X+i}, 0")
    k("s_mov_b32 exec_hi, 0x00ffffff")
    for i in range(4):
        k(f"buffer_load_dwordx4 {V(X+4*i,4)}, v2, {S(SRD_A,4)}, s{S_T+2} offen offset:{i*896}")
    k("s_mov_b32 exec_hi, -1")
    for i in range(4):
        for e in range(4):
            k(f"v_lshlrev_b32 v{XF+8*i+2*e}, 16, v{X+4*i+e}")
            k(f"v_and_b32 v{XF+8*i+2*e+1}, 0xffff0000, v{X+4*i+e}")
    for i in range(4):
        s = SUM + 4 * i; q = s + 2; x = XF + 8 * i
        k(f"v_pk_add_f32 {V(s,2)}, {V(x,2)}, {V(x+2,2)}")
        k(f"v_pk_mul_f32 {V(q,2)}, {V(x,2)}, {V(x,2)}")
    for e in (1, 2, 3):
        for i in range(4):
            s = SUM + 4 * i; q = s + 2; x = XF + 8 * i
            if e >= 2: k(f"v_pk_add_f32 {V(s,2)}, {V(s,2)}, {V(x+2*e,2)}")
            k(f"v_pk_fma_f32 {V(q,2)}, {V(x+2*e,2)}, {V(x+2*e,2)}, {V(q,2)}")
    for i in range(4):
        s = SUM + 4 * i; q = s + 2
        k(f"v_add_f32 v{s}, v{s}, v{s+1}")
        k(f"v_add_f32 v{q}, v{q}, v{q+1}")
    regs = [SUM + 4 * i for i in range(4)] + [SUM + 4 * i + 2 for i in range(4)]
    for step in ("row_shr:1", "row_shr:2", "row_shr:4", "row_shr:8"):
        for r in regs: k(f"v_add_f32_dpp v{r}, v{r}, v{r} {step} row_mask:0xf bank_mask:0xf bound_ctrl:0")
    for r in regs: k(f"v_add_f32_dpp v{r}, v{r}, v{r} row_bcast:15 row_mask:0xa bank_mask:0xf")
    for r in regs: k(f"v_add_f32_dpp v{r}, v{r}, v{r} row_bcast:31 row_mask:0xc bank_mask:0xf")
    inv = f32bits(1.0 / 448.0)
    SM = S_T + 8
    for i in range(4):
        s = SUM + 4 * i; q = s + 2
        k(f"v_mul_f32 v{s}, {inv}, v{s}")
        k(f"v_mul_f32 v{q}, {inv}, v{q}")
    for i in range(4):
        s = SUM + 4 * i; q = s + 2
        k(f"v_fma_f32 v{q}, -v{s}, v{s}, v{q}")
    for i in range(4):
        s = SUM + 4 * i; q = s + 2
        k(f"v_cvt_pk_bf16_f32 v{s+1}, v{s}, v{q}")
    for i in range(4):
        s = SUM + 4 * i; q = s + 2
        k(f"v_lshlrev_b32 v{s}, 16, v{s+1}")
        k(f"v_and_b32 v{q}, 0xffff0000, v{s+1}")
    eps = f32bits(1e-5)
    for i in range(4):
        q = SUM + 4 * i + 2
        k(f"v_add_f32 v{q}, {eps}, v{q}")
    for i in range(4):
        q = SUM + 4 * i + 2
        k(f"v_cvt_pk_bf16_f32 v{q}, v{q}, v{q}")
    for i in range(4):
        q = SUM + 4 * i + 2
        k(f"v_and_b32 v{q}, 0xffff0000, v{q}")
    for i in range(4):
        q = SUM + 4 * i + 2
        k(f"v_sqrt_f32 v{q}, v{q}")
    for i in range(4):
        q = SUM + 4 * i + 2
        k(f"v_cvt_pk_bf16_f32 v{q}, v{q}, v{q}")
    for i in range(4):
        q = SUM + 4 * i + 2
        k(f"v_and_b32 v{q}, 0xffff0000, v{q}")
    for i in range(4):
        q = SUM + 4 * i + 2
        k(f"v_rcp_f32 v{q}, v{q}")
    for i in range(4):
        s = SUM + 4 * i; q = s + 2
        k(f"v_readlane_b32 s{SM+2*i}, v{s}, 63")
        k(f"v_readlane_b32 s{SM+2*i+1}, v{q}, 63")
    for i in range(4):
        for e in range(4):
            x = XF + 8 * i + 2 * e
            t = T + 4 * ((i * 4 + e) % 4)
            sp = S(SM + 2 * i, 2)
            k(f"v_pk_add_f32 {V(t,2)}, {V(x,2)}, {sp} op_sel:[0,0] op_sel_hi:[1,0] neg_lo:[0,1] neg_hi:[0,1]")
            k(f"v_cvt_pk_bf16_f32 v{t+2}, v{t}, v{t+1}")
            k(f"v_lshlrev_b32 v{t}, 16, v{t+2}")
            k(f"v_and_b32 v{t+1}, 0xffff0000, v{t+2}")
            k(f"v_pk_mul_f32 {V(t,2)}, {V(t,2)}, {sp} op_sel:[0,1] op_sel_hi:[1,1]")
            k(f"v_cvt_pk_bf16_f32 v{OUT+4*(2*e)+i}, v{x}, v{t}")
            k(f"v_cvt_pk_bf16_f32 v{OUT+4*(2*e+1)+i}, v{x+1}, v{t+1}")
    k("v_and_b32 v3, 7, v1")
    k(f"v_xor_b32 v4, s{S_WAVE}, v3")
    k("v_xor_b32 v5, 4, v4")
    k("v_lshlrev_b32 v6, 9, v1")
    k("v_lshl_add_u32 v4, v4, 4, v6")
    k("v_lshl_add_u32 v5, v5, 4, v6")
    k("s_mov_b32 exec_hi, 0x00ffffff")
    for e in range(8):
        k(f"ds_write_b128 v{4 + (e & 1)}, {V(OUT+4*e,4)} offset:{LN_LDS + (e >> 1) * 128}")
    k("s_mov_b32 exec_hi, -1")
    k("v_lshrrev_b32 v3, 5, v0")
    k("v_and_b32 v3, 7, v3")
    k("v_xor_b32 v3, v3, v0")
    k("v_and_b32 v3, 7, v3")
    k("v_and_b32 v4, 0xf8, v0")
    k("v_or_b32 v3, v3, v4")
    k("v_lshlrev_b32 v3, 4, v3")
    k("v_lshrrev_b32 v4, 2, v0")
    k("v_lshlrev_b32 v4, 13, v4")
    k("v_and_b32 v5, 3, v0")
    k("v_lshl_add_u32 v4, v5, 4, v4")
    k(f"s_lshl_b32 s{S_T+3}, s{S_T}, 2")
    k.wait_lg(0)
    k.barrier()
    R = X
    for r in range(7):
        k(f"ds_read_b128 {V(OUT+4*r,4)}, v3 offset:{LN_LDS + r*4096}")
    for r in range(7):
        k(f"s_add_u32 s{S_T+4}, s{S_T+3}, {WS_XU + r*524288}")
        k(f"buffer_store_dwordx4 {V(OUT+4*r,4)}, v4, {S(SRD_WS,4)}, s{S_T+4} offen{st}")

def emit_sw(k, st=""):
    LD = 128
    FR = 176
    srd(k, SRD_A, S_W1, D * F * 2)
    srd(k, SRD_B, S_W3, D * F * 2)
    srd(k, SRD_C, S_W2, F * D * 2)
    t = S_T + 20
    k(f"s_sub_u32 s{t}, s{S_WG}, 126")
    k(f"s_lshl_b32 s{t}, s{t}, 3")
    k(f"s_lshl_b32 s{t+1}, s{S_WAVE}, 1")
    k(f"s_add_u32 s{t}, s{t}, s{t+1}")
    k("v_lshrrev_b32 v2, 3, v1")
    k("v_and_b32 v3, 7, v1")
    k("v_lshlrev_b32 v4, 4, v3")
    k(f"s_movk_i32 s{t+2}, 3584")
    k(f"v_mad_u32_u24 v5, v2, s{t+2}, v4")
    k(f"s_movk_i32 s{t+2}, 896")
    k(f"v_mad_u32_u24 v6, v2, s{t+2}, v4")
    for h in range(2):
        b = t + 4 + 6 * h
        k(f"s_add_u32 s{b}, s{t}, {h}")
        k(f"s_mul_i32 s{b+1}, s{b}, 2341")
        k(f"s_lshr_b32 s{b+1}, s{b+1}, 16")
        k(f"s_mul_i32 s{b+2}, s{b+1}, 28")
        k(f"s_sub_u32 s{b+2}, s{b}, s{b+2}")
        k(f"s_mul_i32 s{b+3}, s{b+1}, {16*3584}")
        k(f"s_lshl_b32 s{b+4}, s{b+2}, 7")
        k(f"s_add_u32 s{b+3}, s{b+3}, s{b+4}")
        k(f"s_mul_i32 s{b+4}, s{b+2}, 56")
        k(f"s_add_u32 s{b+4}, s{b+4}, s{b+1}")
        k(f"s_lshl_b32 s{b+4}, s{b+4}, 11")
        k(f"s_add_u32 s{b+4}, s{b+4}, {WS_WA1}")
        k(f"s_mul_i32 s{b+1}, s{b}, 9363")
        k(f"s_lshr_b32 s{b+1}, s{b+1}, 16")
        k(f"s_mul_i32 s{b+2}, s{b+1}, 7")
        k(f"s_sub_u32 s{b+2}, s{b}, s{b+2}")
        k(f"s_mul_i32 s{b+5}, s{b+1}, {16*896}")
        k(f"s_lshl_b32 s{b}, s{b+2}, 7")
        k(f"s_add_u32 s{b+5}, s{b+5}, s{b}")
        k(f"s_mul_i32 s{b}, s{b+2}, 112")
        k(f"s_add_u32 s{b}, s{b}, s{b+1}")
        k(f"s_lshl_b32 s{b}, s{b}, 11")
        k(f"s_add_u32 s{b}, s{b}, {WS_WA2}")
    tmp = t + 16
    for j in range(6):
        m = j >> 1; h = j & 1; b = t + 4 + 6 * h
        srdm = (SRD_A, SRD_B, SRD_C)[m]
        rowb = 896 if m == 2 else 3584
        src = b + 5 if m == 2 else b + 3
        vo = 6 if m == 2 else 5
        k(f"buffer_load_dwordx4 {V(LD+8*j,4)}, v{vo}, {S(srdm,4)}, s{src} offen")
        k(f"s_add_u32 s{tmp}, s{src}, {8*rowb}")
        k(f"buffer_load_dwordx4 {V(LD+8*j+4,4)}, v{vo}, {S(srdm,4)}, s{tmp} offen")
    k("v_lshrrev_b32 v7, 2, v3")
    k("v_mul_u32_u24 v7, 1088, v7")
    k("v_lshl_add_u32 v7, v2, 6, v7")
    k("v_and_b32 v4, 3, v3")
    k("v_lshl_add_u32 v7, v4, 4, v7")
    k(f"s_mul_i32 s{tmp}, s{S_WAVE}, {6*2176}")
    k(f"s_add_u32 s{tmp}, s{tmp}, {SW_LDS}")
    k(f"v_add_u32 v7, s{tmp}, v7")
    k("v_and_b32 v2, 15, v1")
    k("v_lshrrev_b32 v2, 2, v2")
    k("v_lshrrev_b32 v3, 5, v1")
    k("v_bfe_u32 v4, v1, 4, 1")
    k("v_lshlrev_b32 v4, 5, v4")
    k("v_and_b32 v5, 3, v1")
    k("v_lshl_add_u32 v4, v5, 3, v4")
    k("v_lshl_add_u32 v4, v2, 6, v4")
    k(f"v_add_u32 v4, s{tmp}, v4")
    k("v_lshl_add_u32 v5, v3, 9, v4")
    k("v_lshl_add_u32 v6, v3, 8, v4")
    k("v_lshlrev_b32 v2, 4, v1")
    for j in range(6):
        for i in range(2):
            k(f"ds_write_b128 v7, {V(LD+8*j+4*i,4)} offset:{j*2176 + i*512}")
    for j in range(6):
        m = j >> 1
        for e in range(2):
            for rho in range(2):
                if m == 2: off = j * 2176 + e * 1088 + rho * 8 * 64; a = 6
                else: off = j * 2176 + e * 1088 + rho * 4 * 64; a = 5
                k(f"ds_read_b64_tr_b16 {V(FR+8*j+4*e+2*rho,2)}, v{a} offset:{off}")
    for j in range(6):
        m = j >> 1; h = j & 1; b = t + 4 + 6 * h
        for e in range(2):
            if m == 2:
                k(f"s_add_u32 s{tmp}, s{b}, {e*1024}")
            else:
                k(f"s_add_u32 s{tmp}, s{b+4}, {e*28*2048 + m*1024}")
            k(f"buffer_store_dwordx4 {V(FR+8*j+4*e,4)}, v2, {S(SRD_WS,4)}, s{tmp} offen{st}")

def prep_kernel():
    k = Kern("prep_kernel")
    done = prologue(k)
    skip = k.newlabel("noln")
    k(f"s_cmp_ge_u32 s{S_WG}, 128")
    k.branch(f"s_cbranch_scc1 {skip}")
    emit_ln(k)
    k.fence()
    k.label(skip)
    skip2 = k.newlabel("nosw")
    k(f"s_cmp_lt_u32 s{S_WG}, 126")
    k.branch(f"s_cbranch_scc1 {skip2}")
    emit_sw(k)
    k.label(skip2)
    k.label(done)
    k("s_endpgm")
    return k
```

```python
from common import *
import math

KC_LDS = 64
KC_CH = 16672
KC_OFF = (0, 4168, 8328, 12488)
UB_LDS = KC_LDS + 2 * KC_CH
UB_CH = 7680
XY_LDS = 49152
SSM_LDS = XY_LDS + 65536

XSLOT = [0,1,2,3,4,5,6,7, 256,258,260,260, 260,262,264,264, 512,516,768,772, 516,520,772,776,
         1024,1280,1536,1792, 1032,1288,1544,1800]

def cmul(dst, a, b):
    return [f"v_pk_mul_f32 {V(dst,2)}, {V(a,2)}, {V(b,2)} op_sel:[0,0] op_sel_hi:[0,1]",
            f"v_pk_fma_f32 {V(dst,2)}, {V(a,2)}, {V(b,2)}, {V(dst,2)} op_sel:[1,1,0] op_sel_hi:[1,0,1] neg_lo:[1,0,0]"]

def emit_ssm(k, ld="", st="", dbg=False):
    g = S_WG; w = S_WAVE
    PR = 8
    XUA = 16
    XUE = 32
    AW = 48
    AR = 56
    ACC = 64
    VAL = 96
    PK = 160
    E = 192
    TMP = 208
    FR = 96
    sT = S_T
    srd(k, SRD_A, S_LOGA, D * NM * 2)
    srd(k, SRD_B, S_AIM, D * NM * 2)
    srd(k, SRD_C, S_CRE, D * NM * 2)
    srd(k, SRD_D, S_CIM, D * NM * 2)
    k(f"s_lshl_b32 s{sT}, s{g}, 10")
    k("v_lshlrev_b32 v2, 1, v0")
    for c in range(2):
        for i, sr in enumerate((SRD_A, SRD_B, SRD_C, SRD_D)):
            k(f"buffer_load_ushort v{PR+4*c+i}, v2, {S(sr,4)}, s{sT} offen offset:{c*512}")
    k(f"s_lshl_b32 s{sT+1}, s{g}, 2")
    k(f"s_add_u32 s{sT+2}, s{S_LOGDT}, s{sT+1}")
    k(f"s_addc_u32 s{sT+3}, s{S_LOGDT+1}, 0")
    k(f"s_load_dword s{sT+6}, {S(sT+2,2)}, 0")
    k(f"s_add_u32 s{sT+4}, s{S_DSK}, s{sT+1}")
    k(f"s_addc_u32 s{sT+5}, s{S_DSK+1}, 0")
    k(f"s_load_dword s{sT+7}, {S(sT+4,2)}, 0")
    S_LDT = sT + 6; S_DS = sT + 7
    k(f"s_lshl_b32 s{sT+8}, s{g}, 14")
    k(f"s_add_u32 s{sT+8}, s{sT+8}, {WS_XU}")
    k("v_lshlrev_b32 v3, 5, v0")
    for c in range(2):
        k(f"s_add_u32 s{sT+9}, s{sT+8}, {c*8192}")
        k(f"buffer_load_dwordx4 {V(XUA+8*c,4)}, v3, {S(SRD_WS,4)}, s{sT+9} offen{ld}")
        k(f"buffer_load_dwordx4 {V(XUA+8*c+4,4)}, v3, {S(SRD_WS,4)}, s{sT+9} offen offset:16{ld}")
    k(f"s_lshl_b32 s{sT+9}, s{w}, 12")
    k(f"s_add_u32 s{sT+9}, s{sT+9}, s{sT+8}")
    k("v_and_b32 v4, 31, v1")
    k("v_lshlrev_b32 v4, 7, v4")
    k("v_lshrrev_b32 v5, 5, v1")
    k("v_lshl_add_u32 v4, v5, 4, v4")
    for q in range(4):
        k(f"buffer_load_dwordx4 {V(XUE+4*q,4)}, v4, {S(SRD_WS,4)}, s{sT+9} offen offset:{32*q}{ld}")
    k.smem_wait()
    k(f"v_mov_b32 v{TMP}, 0")
    for i in range(1, 4): k(f"v_mov_b32 v{TMP+i}, 0")
    k("v_lshlrev_b32 v6, 4, v0")
    k("v_cmp_gt_u32 vcc, 160, v0")
    k(f"s_and_saveexec_b64 {S(sT+10,2)}, vcc")
    for c in range(2):
        k(f"ds_write_b128 v6, {V(TMP,4)} offset:{UB_LDS + c*UB_CH}")
    k(f"s_mov_b64 exec, {S(sT+10,2)}")
    k("v_and_b32 v6, 3, v0")
    k("v_lshlrev_b32 v6, 4, v6")
    k("v_bfe_u32 v7, v0, 2, 2")
    k(f"v_mul_u32_u24 v7, 4160, v7")
    k("v_add_u32 v6, v6, v7")
    k("v_bfe_u32 v7, v0, 4, 1")
    k(f"v_mul_u32_u24 v7, {KC_CH}, v7")
    k("v_add_u32 v6, v6, v7")
    k("v_cmp_gt_u32 vcc, 32, v0")
    k(f"s_and_saveexec_b64 {S(sT+10,2)}, vcc")
    k(f"ds_write_b128 v6, {V(TMP,4)} offset:{KC_LDS}")
    k(f"s_mov_b64 exec, {S(sT+10,2)}")
    k(f"s_lshl_b32 s{sT+10}, s{w}, 14")
    k(f"s_add_u32 s{sT+10}, s{sT+10}, {XY_LDS}")
    k("v_and_b32 v6, 7, v1")
    k("v_lshlrev_b32 v7, 7, v1")
    k(f"v_add_u32 v7, s{sT+10}, v7")
    for j in range(8):
        k(f"v_xor_b32 v{AW+j}, {j}, v6")
        k(f"v_lshl_add_u32 v{AW+j}, v{AW+j}, 4, v7")
    k("v_and_b32 v6, 15, v1")
    k("v_lshrrev_b32 v6, 2, v6")
    k("v_lshrrev_b32 v7, 1, v6")
    k("v_lshl_add_u32 v7, v5, 2, v7")
    k("v_and_b32 v6, 1, v6")
    k("v_lshlrev_b32 v6, 2, v6")
    k(f"v_bfe_u32 v{TMP+4}, v1, 4, 1")
    k(f"v_lshl_add_u32 v6, v{TMP+4}, 1, v6")
    k(f"v_bfe_u32 v{TMP+4}, v1, 1, 1")
    k(f"v_add_u32 v6, v6, v{TMP+4}")
    k(f"v_and_b32 v{TMP+4}, 1, v1")
    k(f"v_lshlrev_b32 v{TMP+4}, 3, v{TMP+4}")
    k(f"v_add_u32 v{TMP+4}, s{sT+10}, v{TMP+4}")
    for rho in range(2):
        k(f"v_add_u32 v{TMP+5}, {2*rho}, v7")
        k(f"v_xor_b32 v{TMP+6}, v6, v{TMP+5}")
        k(f"v_lshl_add_u32 v{AR+rho}, v{TMP+6}, 4, v{TMP+4}")
        k(f"v_lshl_add_u32 v{AR+rho}, v{TMP+5}, 7, v{AR+rho}")
    log2e = f32bits(math.log2(math.e)); inv2pi = f32bits(1.0 / (2 * math.pi))
    E1, E2, E4, E8, E256, X0 = E, E + 2, E + 4, E + 6, E + 8, E + 10
    for c in range(2):
        t = TMP
        if c == 0: k(f"v_lshlrev_b32 v{t}, 16, s{S_LDT}") if False else k(f"s_lshl_b32 s{sT+11}, s{S_LDT}, 16")
        else: k(f"s_and_b32 s{sT+11}, s{S_LDT}, 0xffff0000")
        k(f"v_mov_b32 v{t}, {log2e}")
        k(f"v_mul_f32 v{t}, s{sT+11}, v{t}")
        k(f"v_exp_f32 v{t}, v{t}")
        k(f"v_cvt_pk_bf16_f32 v{t}, v{t}, v{t}")
        k(f"v_and_b32 v{t}, 0xffff0000, v{t}")
        for i in range(4): k(f"v_lshlrev_b32 v{t+1+i}, 16, v{PR+4*c+i}")
        k(f"v_mul_f32 v{t+1}, {log2e}, v{t+1}")
        k(f"v_exp_f32 v{t+1}, v{t+1}")
        k(f"v_cvt_pk_bf16_f32 v{t+1}, v{t+1}, v{t+1}")
        k(f"v_and_b32 v{t+1}, 0xffff0000, v{t+1}")
        k(f"v_mul_f32 v{t+1}, v{t+1}, v{t}")
        k(f"v_mul_f32 v{t+2}, v{t+2}, v{t}")
        k(f"v_mul_f32 v{X0}, v{t+3}, v{t}")
        k(f"v_mul_f32 v{X0+1}, v{t+4}, v{t}")
        k(f"v_pk_add_f32 {V(X0,2)}, {V(X0,2)}, {V(X0,2)}")
        k(f"v_mul_f32 v{t+1}, {f32bits(-math.log2(math.e))}, v{t+1}")
        k(f"v_mul_f32 v{t+2}, {inv2pi}, v{t+2}")
        for (dst, mlt) in ((E1, 1.0), (E256, 256.0)):
            if mlt == 1.0:
                k(f"v_exp_f32 v{t+5}, v{t+1}")
                k(f"v_fract_f32 v{t+6}, v{t+2}")
            else:
                k(f"v_mul_f32 v{t+5}, {f32bits(mlt)}, v{t+1}")
                k(f"v_mul_f32 v{t+6}, {f32bits(mlt)}, v{t+2}")
                k(f"v_exp_f32 v{t+5}, v{t+5}")
                k(f"v_fract_f32 v{t+6}, v{t+6}")
            k(f"v_cos_f32 v{t+7}, v{t+6}")
            k(f"v_sin_f32 v{t+8}, v{t+6}")
            k(f"v_mul_f32 v{dst}, v{t+5}, v{t+7}")
            k(f"v_mul_f32 v{dst+1}, v{t+5}, v{t+8}")
        for l in cmul(E2, E1, E1) + cmul(E4, E2, E2) + cmul(E8, E4, E4): k(l)
        loc = {}
        nxt = [VAL]
        def new(a):
            r = nxt[0]; nxt[0] += 2; loc[a] = r; return r
        loc[0] = X0
        for a in range(1, 8):
            for l in cmul(new(a), loc[a-1], E1): k(l)
        for l in cmul(new(256), X0, E256): k(l)
        for l in cmul(new(258), loc[256], E2) + cmul(new(260), loc[256], E4) + cmul(new(264), loc[256], E8): k(l)
        for l in cmul(new(262), loc[260], E2): k(l)
        prev = 256
        for b in (512, 768, 1024, 1280, 1536, 1792):
            for l in cmul(new(b), loc[prev], E256): k(l)
            if b < 1024:
                for l in cmul(new(b+4), loc[b], E4): k(l)
            for l in cmul(new(b+8), loc[b], E8): k(l)
            prev = b
        for j in range(16):
            a0, a1 = XSLOT[2*j], XSLOT[2*j+1]
            k(f"v_cvt_pk_bf16_f32 v{PK+j}, v{loc[a0]}, v{loc[a1]}")
            k(f"v_cvt_pk_bf16_f32 v{PK+16+j}, -v{loc[a0]+1}, -v{loc[a1]+1}")
        for j in range(8):
            k(f"ds_write_b128 v{AW+j}, {V(PK+4*j,4)}")
        Y = lambda j: VAL + 2 * j
        E16 = E + 12
        k(f"v_mov_b32 v{Y(0)}, 1.0"); k(f"v_mov_b32 v{Y(0)+1}, 0")
        k(f"v_mov_b32 v{Y(1)}, v{E8}"); k(f"v_mov_b32 v{Y(1)+1}, v{E8+1}")
        for l in cmul(E16, E8, E8): k(l)
        k(f"v_mov_b32 v{Y(2)}, v{E16}"); k(f"v_mov_b32 v{Y(2)+1}, v{E16+1}")
        for j in range(3, 32):
            for l in cmul(Y(j), Y(j-2), E16): k(l)
        for j in range(16):
            k(f"v_cvt_pk_bf16_f32 v{PK+j}, v{Y(2*j)}, v{Y(2*j+1)}")
            k(f"v_cvt_pk_bf16_f32 v{PK+16+j}, v{Y(2*j)+1}, v{Y(2*j+1)+1}")
        for j in range(8):
            k(f"ds_write_b128 v{AW+j}, {V(PK+4*j,4)} offset:8192")
        FA = VAL
        for s in range(8):
            for rho in range(2):
                k(f"ds_read_b64_tr_b16 {V(FA+8*s+2*rho,2)}, v{AR+rho} offset:{s*1024}")
                k(f"ds_read_b64_tr_b16 {V(FA+8*s+4+2*rho,2)}, v{AR+rho} offset:{8192+s*1024}")
        for s in range(8):
            cin = V(ACC+16*c, 16) if s else "0"
            k(f"v_mfma_f32_32x32x16_bf16 {V(ACC+16*c,16)}, {V(FA+8*s,4)}, {V(FA+8*s+4,4)}, {cin}")
    k(f"s_mov_b32 s{sT+11}, 0x07060302")
    k("v_lshrrev_b32 v6, 2, v0")
    k("v_mul_u32_u24 v6, 80, v6")
    k("v_and_b32 v7, 3, v0")
    k("v_lshl_add_u32 v6, v7, 4, v6")
    for c in range(2):
        for j in range(4):
            k(f"v_perm_b32 v{TMP+4*c+j}, v{XUA+8*c+6-2*j}, v{XUA+8*c+7-2*j}, s{sT+11}")
        k(f"ds_write_b128 v6, {V(TMP+4*c,4)} offset:{UB_LDS + c*UB_CH + 32*80}")
    k("v_lshlrev_b32 v6, 4, v1")
    k(f"v_add_u32 v7, s{sT+10}, v6")
    for c in range(2):
        for q in range(4):
            k(f"ds_write_b128 v7, {V(ACC+16*c+4*q,4)} offset:{(c*4+q)*1024}")
    k.wait_lg(0)
    k.barrier()
    k(f"s_lshl_b32 s{sT+11}, s{w}, 10")
    k(f"s_add_u32 s{sT+11}, s{sT+11}, {XY_LDS}")
    k(f"v_add_u32 v7, s{sT+11}, v6")
    Q = VAL
    for c in range(2):
        for ww in range(4):
            k(f"ds_read_b128 {V(Q+16*c+4*ww,4)}, v7 offset:{ww*16384 + c*4096}")
    for c in range(2):
        b = Q + 16 * c
        for i in (0, 2):
            k(f"v_pk_add_f32 {V(b+i,2)}, {V(b+i,2)}, {V(b+4+i,2)}")
            k(f"v_pk_add_f32 {V(b+8+i,2)}, {V(b+8+i,2)}, {V(b+12+i,2)}")
        for i in (0, 2):
            k(f"v_pk_add_f32 {V(b+i,2)}, {V(b+i,2)}, {V(b+8+i,2)}")
    k("v_and_b32 v6, 31, v1")
    k("v_lshlrev_b32 v6, 4, v6")
    k("v_lshl_add_u32 v6, v5, 3, v6")
    k.fence()
    lab = [k.newlabel("seg") for _ in range(4)]; end = k.newlabel("segend")
    k(f"s_cmp_eq_u32 s{w}, 1"); k.branch(f"s_cbranch_scc1 {lab[1]}")
    k(f"s_cmp_eq_u32 s{w}, 2"); k.branch(f"s_cbranch_scc1 {lab[2]}")
    k(f"s_cmp_eq_u32 s{w}, 3"); k.branch(f"s_cbranch_scc1 {lab[3]}")
    P = TMP
    def kaddr(c, lbase): return KC_LDS + c * KC_CH + 2 * (32 + lbase)
    for c in range(2):
        b = Q + 16 * c
        k(f"v_cvt_pk_bf16_f32 v{P+2*c}, v{b}, v{b+1}")
        k(f"v_cvt_pk_bf16_f32 v{P+2*c+1}, v{b+2}, v{b+3}")
        k(f"ds_write_b64 v6, {V(P+2*c,2)} offset:{kaddr(c,0)}")
    k.fence(); k.branch(f"s_branch {end}")
    k.label(lab[1])
    for c in range(2):
        b = Q + 16 * c
        k(f"v_cvt_pk_bf16_f32 v{P+2*c}, v{b}, v{b}")
        k(f"v_cvt_pk_bf16_f32 v{P+2*c+1}, v{b+1}, v{b+2}")
        k(f"ds_write_b64 v6, {V(P+2*c,2)} offset:{kaddr(c,256)}")
    k.fence(); k.branch(f"s_branch {end}")
    k.label(lab[2])
    k("v_cmp_lt_u32 vcc, 31, v1")
    for c in range(2):
        b = Q + 16 * c
        for hlf in range(2):
            r0, r1 = b + 2 * hlf, b + 2 * hlf + 1
            p = P + 4 * c + 2 * hlf
            k(f"v_cndmask_b32 v{P+8}, v{r0}, v{r1}, vcc")
            k(f"v_cvt_pk_bf16_f32 v{p}, v{r0}, v{r0}")
            k(f"v_cvt_pk_bf16_f32 v{p+1}, v{P+8}, v{r1}")
            k(f"ds_write_b64 v6, {V(p,2)} offset:{kaddr(c,512+256*hlf)}")
    k.fence(); k.branch(f"s_branch {end}")
    k.label(lab[3])
    for c in range(2):
        b = Q + 16 * c
        for q in range(4):
            p = P + 8 * c + 2 * q
            k(f"v_cvt_pk_bf16_f32 v{p}, v{b+q}, v{b+q}")
            k(f"v_mov_b32 v{p+1}, v{p}")
            k(f"ds_write_b64 v6, {V(p,2)} offset:{kaddr(c,1024+256*q)}")
    k(f"s_mov_b32 exec_lo, 0x55555555"); k("s_mov_b32 exec_hi, 0")
    for c in range(2):
        for q in range(4):
            p = P + 8 * c + 2 * q
            k(f"ds_write_b16 v6, v{p} offset:{kaddr(c,1024+256*q)+8}")
    k("s_mov_b64 exec, -1")
    k.fence()
    k.label(end)
    k.wait_all()
    k.barrier()
    k("v_lshlrev_b32 v6, 4, v0")
    W = VAL
    for c in range(2):
        base = KC_LDS + c * KC_CH
        k(f"ds_read_b64 {V(W+24*c,2)}, v6 offset:{base + 2*(8*3+4)}")
        k(f"ds_read_b128 {V(W+24*c+2,4)}, v6 offset:{base + 2*(8*3+8)}") if False else None
    for c in range(2):
        base = KC_LDS + c * KC_CH
        k(f"ds_read_b128 {V(W+24*c+2,4)}, v6 offset:{base + 2*(8*3+8)}")
    for c in range(2):
        w0 = W + 24 * c; o = w0 + 8; m = w0 + 16; base = KC_LDS + c * KC_CH
        for i in range(4): k(f"v_alignbit_b32 v{o+i}, v{w0+i+1}, v{w0+i}, 16")
        for i in range(4): k(f"v_alignbit_b32 v{o+4+i}, v{w0+i+2}, v{w0+i+1}, 16")
        k(f"v_pk_mov_b32 {V(m,2)}, {V(w0,2)}, {V(w0+2,2)} op_sel:[1,0]")
        k(f"v_pk_mov_b32 {V(m+2,2)}, {V(w0+2,2)}, {V(w0+4,2)} op_sel:[1,0]")
        dst = lambda cp: base + KC_OFF[cp] + 2 * (8 * 3 + 4)
        k(f"ds_write_b128 v6, {V(o,4)} offset:{dst(1)}")
        k(f"ds_write_b128 v6, {V(m,4)} offset:{dst(2)}")
        k(f"ds_write_b128 v6, {V(o+4,4)} offset:{dst(3)}")
    k.wait_lg(0)
    k.barrier()
    if dbg:
        lab2 = k.newlabel("nodbg")
        k(f"s_cmp_ge_u32 s{g}, 4"); k.branch(f"s_cbranch_scc1 {lab2}")
        k("v_lshlrev_b32 v6, 4, v0")
        k(f"s_mul_i32 s{sT+11}, s{g}, 36864")
        k(f"s_add_u32 s{sT+11}, s{sT+11}, {WS_DBG}")
        for i in range(9):
            k(f"ds_read_b128 {V(VAL,4)}, v6 offset:{KC_LDS + i*4096}")
            k(f"s_add_u32 s{sT+12}, s{sT+11}, {i*4096}")
            k(f"buffer_store_dwordx4 {V(VAL,4)}, v6, {S(SRD_WS,4)}, s{sT+12} offen")
            k.wait_all()
        k.label(lab2)
    AB, BB = 6, 7
    k(f"s_lshr_b32 s{sT+11}, s{w}, 1")
    k(f"s_and_b32 s{sT+12}, s{w}, 1")
    k(f"v_and_b32 v{TMP}, 31, v1")
    k(f"v_add_u32 v{TMP+1}, 1, v{TMP}")
    k(f"v_and_b32 v{TMP+1}, 3, v{TMP+1}")
    k(f"v_add_u32 v{TMP+2}, 25, v{TMP}")
    k(f"v_sub_u32 v{TMP+2}, v{TMP+2}, v{TMP+1}")
    k(f"v_lshlrev_b32 v{TMP+2}, 1, v{TMP+2}")
    k(f"v_mul_u32_u24 v{TMP+3}, 4160, v{TMP+1}")
    k(f"v_add_u32 v{TMP+2}, v{TMP+2}, v{TMP+3}")
    k(f"v_cmp_ne_u32 vcc, 0, v{TMP+1}")
    k(f"v_cndmask_b32 v{TMP+3}, 0, 8, vcc") if False else None
    k(f"v_mov_b32 v{TMP+3}, 0")
    k(f"v_mov_b32 v{TMP+4}, 8")
    k(f"v_cndmask_b32 v{TMP+3}, v{TMP+3}, v{TMP+4}, vcc")
    k(f"v_add_u32 v{TMP+2}, v{TMP+2}, v{TMP+3}")
    k(f"v_lshlrev_b32 v{TMP+3}, 4, v5")
    k(f"v_sub_u32 v{TMP+2}, v{TMP+2}, v{TMP+3}")
    k(f"s_mul_i32 s{sT+13}, s{sT+11}, {KC_CH}")
    k(f"s_add_u32 s{sT+13}, s{sT+13}, {KC_LDS - 32}")
    k(f"s_lshl_b32 s{sT+14}, s{sT+12}, 10")
    k(f"s_add_u32 s{sT+13}, s{sT+13}, s{sT+14}")
    k(f"v_add_u32 v{AB}, s{sT+13}, v{TMP+2}")
    k(f"v_mul_u32_u24 v{TMP+2}, 80, v{TMP}")
    k(f"v_add_u32 v{TMP+2}, v{TMP+2}, v{TMP+3}")
    k(f"s_mul_i32 s{sT+13}, s{sT+11}, {UB_CH}")
    k(f"s_add_u32 s{sT+13}, s{sT+13}, {UB_LDS}")
    k(f"s_mul_i32 s{sT+14}, s{sT+12}, {80*16}")
    k(f"s_sub_u32 s{sT+13}, s{sT+13}, s{sT+14}")
    k(f"v_add_u32 v{BB}, s{sT+13}, v{TMP+2}")
    def loads(i, buf):
        f = FR + 32 * buf; o = []
        for kap in range(2):
            for (slot, dl) in ((0, i), (2, i + 32)):
                r = f + 4 * (slot + kap); off = 64 * dl + 32 * (1 - kap)
                o.append(f"ds_read_b64 {V(r,2)}, v{AB} offset:{off}")
                o.append(f"ds_read_b64 {V(r+2,2)}, v{AB} offset:{off+8}")
            for (slot, blk) in ((4, 32 - i), (6, 64 - i)):
                r = f + 4 * (slot + kap)
                o.append(f"ds_read_b128 {V(r,4)}, v{BB} offset:{80*blk + 32*kap}")
        return o
    def mfmas(i, buf):
        f = FR + 32 * buf; o = []
        fr = lambda slot, kap: V(f + 4 * (slot + kap), 4)
        for kap in range(2):
            c0 = V(ACC, 16) if (i or kap) else "0"
            c1 = V(ACC + 16, 16) if (i or kap) else "0"
            o.append(f"v_mfma_f32_32x32x16_bf16 {V(ACC,16)}, {fr(0,kap)}, {fr(4,kap)}, {c0}")
            o.append(f"v_mfma_f32_32x32x16_bf16 {V(ACC+16,16)}, {fr(2,kap)}, {fr(4,kap)}, {c1}")
            o.append(f"v_mfma_f32_32x32x16_bf16 {V(ACC+16,16)}, {fr(0,kap)}, {fr(6,kap)}, {V(ACC+16,16)}")
        return o
    for l in loads(0, 0): k(l)
    for i in range(16):
        nl = loads(i + 1, (i + 1) & 1) if i < 15 else []
        mf = mfmas(i, i & 1)
        for j, m in enumerate(mf):
            k(m)
            for l in nl[2*j:2*j+2]: k(l)
    k("v_lshlrev_b32 v6, 4, v1")
    k(f"s_lshl_b32 s{sT+13}, s{w}, 12")
    k(f"s_add_u32 s{sT+13}, s{sT+13}, {XY_LDS}")
    k(f"v_add_u32 v7, s{sT+13}, v6")
    k(f"s_xor_b32 s{sT+14}, s{w}, 1")
    k(f"s_lshl_b32 s{sT+14}, s{sT+14}, 12")
    k(f"s_add_u32 s{sT+14}, s{sT+14}, {XY_LDS}")
    k(f"v_add_u32 v6, s{sT+14}, v6")
    lo = k.newlabel("par0"); e2 = k.newlabel("parend")
    k.nop(12)
    k(f"s_cmp_eq_u32 s{sT+12}, 0"); k.branch(f"s_cbranch_scc1 {lo}")
    for q in range(4): k(f"ds_write_b128 v7, {V(ACC+4*q,4)} offset:{q*1024}")
    for i in range(0, 16, 2): k(f"v_pk_mov_b32 {V(ACC+i,2)}, {V(ACC+16+i,2)}, {V(ACC+16+i,2)} op_sel:[0,1]")
    k.fence(); k.branch(f"s_branch {e2}")
    k.label(lo)
    for q in range(4): k(f"ds_write_b128 v7, {V(ACC+16+4*q,4)} offset:{q*1024}")
    k.fence()
    k.label(e2)
    k.wait_all()
    k.barrier()
    Y = VAL
    for q in range(4): k(f"ds_read_b128 {V(Y+4*q,4)}, v6 offset:{q*1024}")
    for i in range(0, 16, 2): k(f"v_pk_add_f32 {V(ACC+i,2)}, {V(ACC+i,2)}, {V(Y+i,2)}")
    k(f"s_lshl_b32 s{sT+13}, s{S_DS}, 16")
    k(f"s_and_b32 s{sT+14}, s{S_DS}, 0xffff0000")
    k(f"s_cmp_eq_u32 s{sT+11}, 0")
    k(f"s_cselect_b32 s{sT+13}, s{sT+13}, s{sT+14}")
    H = PK
    mask = sT + 15
    k(f"s_mov_b32 s{mask}, 0xffff0000")
    for i in range(0, 16, 2):
        t = TMP + 8 * ((i // 2) % 2)
        x0, x1 = XUE + i, XUE + i + 1
        k(f"v_cvt_pk_bf16_f32 v{t}, v{ACC+i}, v{ACC+i+1}")
        k(f"v_and_b32 v{t+2}, s{mask}, v{x0}")
        k(f"v_and_b32 v{t+3}, s{mask}, v{x1}")
        k(f"v_pk_mul_f32 {V(t+2,2)}, {V(t+2,2)}, {S(sT+13,2) if (sT+13)%2==0 else None} op_sel_hi:[1,0]") if (sT + 13) % 2 == 0 else (k(f"v_mul_f32 v{t+2}, s{sT+13}, v{t+2}"), k(f"v_mul_f32 v{t+3}, s{sT+13}, v{t+3}"))
        k(f"v_cvt_pk_bf16_f32 v{t+1}, v{t+2}, v{t+3}")
        k(f"v_lshlrev_b32 v{t+2}, 16, v{t}")
        k(f"v_and_b32 v{t+3}, s{mask}, v{t}")
        k(f"v_lshlrev_b32 v{t+4}, 16, v{t+1}")
        k(f"v_and_b32 v{t+5}, s{mask}, v{t+1}")
        k(f"v_pk_add_f32 {V(t+2,2)}, {V(t+2,2)}, {V(t+4,2)}")
        k(f"v_cvt_pk_bf16_f32 v{t}, v{t+2}, v{t+3}")
        k(f"v_lshlrev_b32 v{t+2}, 16, v{t}")
        k(f"v_and_b32 v{t+3}, s{mask}, v{t}")
        k(f"v_lshlrev_b32 v{t+4}, 16, v{x0}")
        k(f"v_lshlrev_b32 v{t+5}, 16, v{x1}")
        k(f"v_pk_add_f32 {V(t+2,2)}, {V(t+2,2)}, {V(t+4,2)}")
        k(f"v_cvt_pk_bf16_f32 v{H + i//2}, v{t+2}, v{t+3}")
    for p in range(2):
        k(f"v_permlane32_swap_b32 v{H+4*p}, v{H+4*p+2}")
        k(f"v_permlane32_swap_b32 v{H+4*p+1}, v{H+4*p+3}")
    k(f"s_lshl_b32 s{sT+13}, s{g}, 13")
    k(f"s_lshl_b32 s{sT+14}, s{w}, 11")
    k(f"s_add_u32 s{sT+13}, s{sT+13}, s{sT+14}")
    k(f"s_add_u32 s{sT+13}, s{sT+13}, {WS_HT}")
    k("v_and_b32 v6, 31, v1")
    k("v_lshlrev_b32 v6, 6, v6")
    k("v_lshl_add_u32 v6, v5, 4, v6")
    for p in range(2):
        k(f"buffer_store_dwordx4 {V(H+4*p,4)}, v6, {S(SRD_WS,4)}, s{sT+13} offen offset:{32*p}{st}")

def ssm_kernel(dbg=False):
    k = Kern("ssm_kernel")
    done = prologue(k)
    emit_ssm(k, dbg=dbg)
    k.label(done)
    k("s_endpgm")
    return k
```

```python
import sys
sys.path.insert(0, 'gen')
from prep import *
from ssm import *
from gemm import *
HDR = open('sequential_preLN__ssm_conv_s4d__glu_gated_swiglu__prompt.s.ref').read().split("; Override launch")[0].rstrip("\n").split("\n")
ks = [prep_kernel(), ssm_kernel(False), gemm1_kernel(), gemm2_kernel()]
launches = [('prep_kernel',224,256,PREP_LDS),('ssm_kernel',224,256,SSM_LDS),('gemm1_kernel',224,256,G1_LDS),('gemm2_kernel',224,256,G2_LDS)]
txt = build_file(HDR, launches, [(ks[0],256,256,102),(ks[1],256,256,102),(ks[2],512,256,102),(ks[3],512,256,102)])
out = sys.argv[1] if len(sys.argv) > 1 else 'v1.s'
open(out,'w').write(txt)
for k in ks: print(k.name, k.count(), k.maxv, k.maxa, k.maxs)
```

```python
import sys
sys.path.insert(0, 'gen')
from prep import *
from ssm import *
from gemm import *
HDR = open('sequential_preLN__ssm_conv_s4d__glu_gated_swiglu__prompt.s.ref').read().split("; Override launch")[0].rstrip("\n").split("\n")
def empty():
    k = Kern("empty_kernel"); k("s_endpgm"); return k
def mk(extra_end, dup=None):
    ks = [prep_kernel(), ssm_kernel(False), gemm1_kernel(), gemm2_kernel(), empty()]
    launches = [('prep_kernel',224,256,PREP_LDS),('ssm_kernel',224,256,SSM_LDS),('gemm1_kernel',224,256,G1_LDS),('gemm2_kernel',224,256,G2_LDS)]
    if dup is not None: launches.insert(dup, launches[dup])
    launches += [('empty_kernel',224,256,0)]*extra_end
    kk = [(ks[0],256,256,102),(ks[1],256,256,102),(ks[2],512,256,102),(ks[3],512,256,102)]
    if extra_end: kk.append((ks[4],32,32,32))
    return build_file(HDR, launches, kk)
open('e_empty4.s','w').write(mk(4))
open('e_dup0.s','w').write(mk(0,0))
open('e_dup1.s','w').write(mk(0,1))
open('e_dup2.s','w').write(mk(0,2))
open('e_dup3.s','w').write(mk(0,3))
open('e_base.s','w').write(mk(0))
```

```python
import re

TRANS = ("v_exp_f32", "v_log_f32", "v_rcp_f32", "v_rsq_f32", "v_sqrt_f32", "v_sin_f32", "v_cos_f32")
RMW_VALU = ("v_fmac_f32", "v_dot2c_f32_bf16", "v_pk_fmac", "v_fmamk", "v_writelane_b32")

_reg_re = re.compile(r"^(-|\|)?(abs\()?([vas])(\d+|\[(\d+):(\d+)\])\)?\|?$")

def regs_of(tok):
    tok = tok.strip()
    if tok in ("vcc", "vcc_lo", "vcc_hi"): return {("s", "vcc")}
    if tok == "exec": return {("s", "exec")}
    if tok == "m0": return {("s", "m0")}
    m = _reg_re.match(tok)
    if not m: return set()
    k = m.group(3)
    if m.group(5) is not None:
        return {(k, i) for i in range(int(m.group(5)), int(m.group(6)) + 1)}
    return {(k, int(m.group(4)))}

class Ins:
    __slots__ = ("text", "op", "ops", "mods", "kind", "wr", "rd", "tag", "nbytes")
    def __init__(self, text, tag=None):
        self.text = text; self.tag = tag
        t = text.strip()
        parts = t.split(None, 1)
        self.op = parts[0]
        rest = parts[1] if len(parts) > 1 else ""
        toks = [x.strip() for x in rest.split(",")] if rest else []
        mods = ""
        if toks:
            last = toks[-1].split(None, 1)
            toks[-1] = last[0]
            if len(last) > 1: mods = last[1]
        m = re.search(r"\s(op_sel|op_sel_hi|neg_lo|neg_hi|offset|offset0|offset1|offen|lds|sc0|sc1|nt|row_|quad_perm|wave_|bound_ctrl|dst_sel|bank_mask|off\b|cbsz|abid|blgp)", " " + rest)
        if m:
            cut = m.start()
            main = (" " + rest)[:cut]; mods = (" " + rest)[cut:]
            toks = [x.strip() for x in main.split(",") if x.strip()]
        self.ops = toks; self.mods = mods
        self.classify()
    def classify(self):
        op = self.op; o = self.ops
        R = lambda i: regs_of(o[i]) if i < len(o) else set()
        wr = set(); rd = set()
        if op.startswith("v_mfma"):
            kind = "mfma"; wr = R(0); rd = R(1) | R(2) | R(3)
        elif op.startswith("v_cmp"):
            kind = "valu"; wr = R(0); rd = R(1) | R(2)
            if op.startswith("v_cmpx"): wr |= {("s", "exec")}
        elif op.startswith("v_readlane") or op.startswith("v_readfirstlane"):
            kind = "valu"; wr = R(0); rd = R(1) | R(2)
        elif op.startswith("v_permlane"):
            kind = "valu"; wr = R(0) | R(1); rd = R(0) | R(1)
        elif op.startswith("v_"):
            kind = "valu"; wr = R(0)
            start = 1
            if op in ("v_add_co_u32", "v_addc_co_u32", "v_sub_co_u32", "v_mad_u64_u32"):
                wr |= R(1); start = 2
            for i in range(start, len(o)): rd |= R(i)
            if op.startswith(RMW_VALU) or "dst_unused:UNUSED_PRESERVE" in self.mods or "_dpp" in op:
                rd |= R(0)
            if op.startswith("v_cndmask") and len(o) == 3: rd |= {("s", "vcc")}
        elif op.startswith("ds_read") or op.startswith("ds_bpermute") or op.startswith("ds_swizzle"):
            kind = "dsr"; wr = R(0)
            for i in range(1, len(o)): rd |= R(i)
        elif op.startswith("ds_write"):
            kind = "dsw"
            for i in range(len(o)): rd |= R(i)
        elif op.startswith("buffer_load") or op.startswith("global_load"):
            if " lds" in (" " + self.mods) or "_lds_" in op:
                kind = "dma"
                for i in range(len(o)): rd |= R(i)
                rd |= {("s", "m0")}
            else:
                kind = "vml"; wr = R(0)
                for i in range(1, len(o)): rd |= R(i)
        elif op.startswith("buffer_store") or op.startswith("global_store"):
            kind = "vms"
            for i in range(len(o)): rd |= R(i)
        elif op.startswith("buffer_atomic") or op.startswith("global_atomic"):
            kind = "vma"
            if "sc0" in self.mods:
                wr = R(0)
                for i in range(1, len(o)): rd |= R(i)
            else:
                for i in range(len(o)): rd |= R(i)
        elif op.startswith("s_load") or op.startswith("s_buffer_load") or op.startswith("s_memtime") or op.startswith("s_memrealtime"):
            kind = "smem"; wr = R(0)
            for i in range(1, len(o)): rd |= R(i)
        elif op == "s_waitcnt": kind = "wait"
        elif op == "s_nop": kind = "nop"
        elif op in ("s_barrier", "s_endpgm", "s_sleep", "s_setprio"): kind = "misc"
        elif op.startswith("s_cbranch") or op == "s_branch": kind = "branch"
        elif op.startswith("s_cmp"):
            kind = "salu"
            for i in range(len(o)): rd |= R(i)
        elif op.startswith("s_"):
            kind = "salu"; wr = R(0)
            for i in range(1, len(o)): rd |= R(i)
            if "saveexec" in op: wr |= {("s", "exec")}
        else:
            raise ValueError("unknown instruction: " + self.text)
        self.kind = kind; self.wr = wr; self.rd = rd
    def store_width(self):
        if self.kind in ("vms",) and (self.op.endswith("x4") or self.op.endswith("x3")): return True
        return False
    def mfma_passes(self):
        if "32x32x16" in self.op: return 8
        if "16x16x32" in self.op: return 4
        raise ValueError(self.op)

class Kern:
    def __init__(self, name):
        self.name = name
        self.out = []
        self.vmq = []
        self.lgq = []
        self.hist = []
        self.uid = 0
        self.maxv = 0; self.maxa = -1; self.maxs = 0
    def raw(self, s): self.out.append(s)
    def comment(self, s): self.out.append("    ; " + s)
    def label(self, name):
        self.out.append(name + ":")
        self.hist = []
    def newlabel(self, base="L"):
        self.uid += 1
        return f"{self.name}_{base}{self.uid}"
    def _wait(self, vm=None, lg=None):
        parts = []
        if vm is not None: parts.append(f"vmcnt({min(vm,63)})")
        if lg is not None: parts.append(f"lgkmcnt({min(lg,15)})")
        if not parts: return
        self._push(Ins("s_waitcnt " + " ".join(parts)))
        if vm is not None:
            self.vmq = self.vmq[len(self.vmq) - vm:] if vm > 0 else []
        if lg is not None:
            self.lgq = self.lgq[len(self.lgq) - lg:] if lg > 0 else []
    def wait_vm(self, n=0):
        if len(self.vmq) > n: self._wait(vm=n)
    def wait_lg(self, n=0):
        if len(self.lgq) > n: self._wait(lg=n)
    def wait_all(self):
        self._push(Ins("s_waitcnt vmcnt(0) lgkmcnt(0)")); self.vmq = []; self.lgq = []
    def wait_tag(self, tag):
        idx = [i for i, (r, t) in enumerate(self.vmq) if t == tag]
        if idx:
            n = len(self.vmq) - 1 - max(idx)
            self._wait(vm=n)
    def wait_lgtag(self, tag):
        idx = [i for i, (r, t) in enumerate(self.lgq) if t == tag]
        if idx:
            n = len(self.lgq) - 1 - max(idx)
            self._wait(lg=n)
    def fence(self):
        vm = None; lg = None
        if self.vmq: vm = 0
        if self.lgq: lg = 0
        self._wait(vm, lg)
    def forget(self):
        self.vmq = []; self.lgq = []
    def _auto_wait(self, ins):
        touched = ins.rd | ins.wr
        vm = None; lg = None
        for i, (r, t) in enumerate(self.vmq):
            if r & touched:
                n = len(self.vmq) - 1 - i
                vm = n if vm is None else min(vm, n)
        for i, (r, t) in enumerate(self.lgq):
            if r & touched:
                n = len(self.lgq) - 1 - i
                lg = n if lg is None else min(lg, n)
        if vm is not None and vm >= 63: vm = 62 if False else vm
        self._wait(vm, lg)
    def _need_nops(self, ins):
        need = 0
        dist = 0
        for p in reversed(self.hist):
            req = 0
            vw = {r for r in p.wr if r[0] in "va"}
            sw = {r for r in p.wr if r[0] == "s"}
            if p.kind == "valu":
                istrans = p.op.startswith(TRANS)
                if ins.kind == "mfma" and (vw & ins.rd): req = max(req, 2)
                if ins.kind == "mfma" and ("s", "exec") in p.wr: req = max(req, 4)
                if ins.kind == "valu":
                    if istrans and (vw & (ins.rd | ins.wr)) and not ins.op.startswith(TRANS): req = max(req, 1)
                    if istrans and (vw & ins.rd): req = max(req, 1)
                    if ("_dpp" in ins.op) and (vw & ins.rd): req = max(req, 2)
                    if ins.op.startswith("v_permlane") and (vw & ins.rd): req = max(req, 2)
                    if (ins.op.startswith("v_readlane") or ins.op.startswith("v_readfirstlane")) and (vw & ins.rd): req = max(req, 1)
                    if sw & ins.rd:
                        req = max(req, 2)
                        if ins.op.startswith(("v_readlane", "v_writelane")): req = max(req, 4)
                    if p.op.startswith("v_dot2") and (vw & (ins.rd | ins.wr)):
                        same = (p.op == ins.op) and not (vw & (regs_of(ins.ops[1]) | regs_of(ins.ops[2])))
                        if not same: req = max(req, 3)
                    if ("sdwa" in p.op or "op_sel" in p.mods and p.op.startswith("v_cvt")) and (vw & ins.rd): req = max(req, 1)
                if ins.kind in ("vml", "vms", "vma", "dma", "dsr", "dsw"):
                    if sw & ins.rd: req = max(req, 5)
                    if istrans and (vw & ins.rd): req = max(req, 1)
                    if p.op.startswith("v_dot2") and (vw & ins.rd): req = max(req, 3)
                if ins.kind in ("salu", "branch", "smem") and (sw & ins.rd): req = max(req, 4)
                if ins.kind == "branch" and (("s", "vcc") in p.wr or ("s", "exec") in p.wr): req = max(req, 5)
            elif p.kind == "mfma":
                ps = p.mfma_passes()
                D = p.wr
                raw_valu = {4: 8, 8: 12}[ps]; ovl = {4: 6, 8: 10}[ps]; war = {4: 3, 8: 7}[ps]
                if ins.kind == "mfma":
                    C = regs_of(ins.ops[3]); AB = regs_of(ins.ops[1]) | regs_of(ins.ops[2])
                    if D & AB: req = max(req, raw_valu)
                    if D & C:
                        if C == D and ins.mfma_passes() == ps: pass
                        else: req = max(req, ovl)
                    if (D & ins.wr) and not (C == D): req = max(req, ovl)
                elif ins.kind in ("valu", "dsr", "dsw", "vml", "vms", "vma", "dma"):
                    if D & (ins.rd | ins.wr): req = max(req, raw_valu)
                    if ins.kind == "valu":
                        Cp = regs_of(p.ops[3])
                        if Cp & ins.wr: req = max(req, war)
            elif p.kind == "vms" and p.store_width():
                data = regs_of(p.ops[0]) if p.op.startswith("buffer") else regs_of(p.ops[1])
                if ins.kind == "valu" and (data & ins.wr): req = max(req, 2)
                elif data & ins.wr: req = max(req, 1)
            elif p.kind == "salu":
                if ("s", "m0") in p.wr and ins.kind == "dma": req = max(req, 1)
            need = max(need, req - dist)
            dist += self._states(p)
            if dist > 24: break
        return need
    def _states(self, p):
        if p.kind == "nop": return int(p.ops[0]) + 1
        return 1
    def _push(self, ins):
        self.out.append(ins)
        self.hist.append(ins)
        if len(self.hist) > 40: self.hist = self.hist[-40:]
        for (k, i) in ins.wr | ins.rd:
            if isinstance(i, int):
                if k == "v": self.maxv = max(self.maxv, i)
                elif k == "a": self.maxa = max(self.maxa, i)
                elif k == "s": self.maxs = max(self.maxs, i)
    def nop(self, n):
        while n > 0:
            c = min(n, 16)
            self._push(Ins(f"s_nop {c-1}")); n -= c
    def I(self, text, tag=None):
        ins = Ins(text, tag)
        if ins.kind not in ("wait", "nop", "misc", "branch"):
            self._auto_wait(ins)
        n = self._need_nops(ins)
        if n > 0: self.nop(n)
        self._push(ins)
        if ins.kind in ("vml", "vma"): self.vmq.append((set(ins.wr), tag))
        elif ins.kind in ("vms", "dma"): self.vmq.append((set(), tag))
        elif ins.kind == "dsr": self.lgq.append((set(ins.wr), tag))
        elif ins.kind == "dsw": self.lgq.append((set(), tag))
        elif ins.kind == "smem":
            assert not self.lgq, "smem mixed with lds ops"
        if len(self.vmq) > 63: self.vmq = self.vmq[-63:]
        if len(self.lgq) > 15: self.lgq = self.lgq[-15:]
        return ins
    def __call__(self, text, tag=None):
        for l in text.split("\n"):
            l = l.split(";")[0].strip()
            if l: self.I(l, tag)
    def stamp(self, i):
        if not getattr(self, "prof", False): return
        self.wait_lg(0)
        self._push(Ins("s_memrealtime s[98:99]"))
        self._push(Ins("s_waitcnt lgkmcnt(0)"))
        self._push(Ins(f"s_mov_b32 s{80+i}, s98"))
        self.nstamp = max(getattr(self, "nstamp", 0), i + 1)
    def smem_wait(self):
        self._push(Ins("s_waitcnt lgkmcnt(0)")); self.lgq = []
    def barrier(self):
        self.I("s_barrier")
    def branch(self, text):
        self.I(text)
        self.hist = []
    def text(self):
        L = []
        for x in self.out:
            L.append(x if isinstance(x, str) else "    " + x.text)
        return "\n".join(L)
    def count(self):
        return sum(1 for x in self.out if not isinstance(x, str))

def build_file(header_lines, launches, kernels, single=False):
    out = list(header_lines)
    for (n, g, b, l) in launches:
        if single: out.append(f"; @launch grid=({g},1,1) block=({b},1,1) lds={l}")
        else: out.append(f"; @launch kernel={n} grid=({g},1,1) block=({b},1,1) lds={l}")
    out.append('.amdgcn_target "amdgcn-amd-amdhsa--gfx950"')
    out.append(".text")
    for (k, vg, acc, sg) in kernels:
        out.append(f".globl {k.name}\n.p2align 8\n.type {k.name},@function\n{k.name}:")
        out.append(k.text())
    out.append('.section .rodata,"a"')
    for (k, vg, acc, sg) in kernels:
        out.append(".p2align 6")
        out.append(f".amdhsa_kernel {k.name}")
        out.append(f"  .amdhsa_next_free_vgpr {vg}")
        out.append(f"  .amdhsa_next_free_sgpr {sg}")
        out.append(f"  .amdhsa_accum_offset {acc}")
        out.append("  .amdhsa_group_segment_fixed_size 0")
        out.append("  .amdhsa_kernarg_size 112")
        out.append("  .amdhsa_user_sgpr_count 2")
        out.append("  .amdhsa_user_sgpr_kernarg_segment_ptr 1")
        out.append("  .amdhsa_system_sgpr_workgroup_id_x 1")
        out.append(".end_amdhsa_kernel")
    return "\n".join(out) + "\n"
```

```python
import sys, math
sys.path.insert(0, 'gen')
from asmlib import *

D = 448; L = 2048; F = 1792; NM = 256
NWG = 224
NTOT = 256
WS_XU = 0
WS_HT = WS_XU + D * L * 4
WS_WA1 = WS_HT + D * L * 2
WS_WA2 = WS_WA1 + 56 * 28 * 2 * 1024
WS_HH = WS_WA2 + 14 * 112 * 1024
WS_SYNC = WS_HH + 64 * 112 * 1024
WS_ST = WS_SYNC + 8192
WS_DBG = WS_ST + 16384
WS_END = WS_DBG + (4 << 20)
SYNC_B2 = WS_SYNC
SYNC_B3 = WS_SYNC + 4096
SYNC_ST = WS_SYNC + 6144
DBG_W = 4

S_WG = 2; S_WAVE = 3
S_U, S_LOGA, S_AIM, S_CRE, S_CIM, S_LOGDT, S_DSK, S_BX = 4, 6, 8, 10, 12, 14, 16, 18
S_W1, S_W3, S_W2, S_OUT, S_DBGP, S_WS = 20, 22, 24, 26, 28, 30
SRD_WS = 32; SRD_A = 36; SRD_B = 40; SRD_C = 44; SRD_D = 48
S_T = 52
S_LDT = 70; S_DS = 71
S_TB, S_FB, S_PHI, S_TB2, S_DP = 72, 73, 74, 75, 76
S_P0, S_P1, S_P2 = 77, 78, 79
V_L16 = 2
V_HH = 3
PR = 240

def S(i, n=1): return f"s{i}" if n == 1 else f"s[{i}:{i+n-1}]"
def V(i, n=1): return f"v{i}" if n == 1 else f"v[{i}:{i+n-1}]"
def A(i, n=1): return f"a{i}" if n == 1 else f"a[{i}:{i+n-1}]"
def f32bits(x):
    import struct
    return "0x%08x" % struct.unpack("<I", struct.pack("<f", x))[0]

def srd(k, dst, ptr, size, off=0):
    if off:
        k(f"s_add_u32 s{dst}, s{ptr}, {off}"); k(f"s_addc_u32 s{dst+1}, s{ptr+1}, 0")
    else:
        k(f"s_mov_b32 s{dst}, s{ptr}"); k(f"s_mov_b32 s{dst+1}, s{ptr+1}")
    k(f"s_mov_b32 s{dst+2}, {size}"); k(f"s_mov_b32 s{dst+3}, 0x20000")

def interleave(main, side, per, start=0):
    out = []; side = list(side); acc = 0.0; n = 0
    for m in main:
        out.append(m)
        if m.startswith("v_mfma"):
            n += 1
            if n > start:
                acc += per
                while acc >= 1.0 and side:
                    out.append(side.pop(0)); acc -= 1.0
    out += side
    return out

def spread(main, side, start=0, end=None):
    end = len(main) if end is None else end
    out = []; side = list(side); n = len(side); span = max(end - start, 1); done = 0
    for i, m in enumerate(main):
        out.append(m)
        if i >= start:
            want = min(n, int((i - start + 1) * n / span + 1e-9))
            while done < want:
                out.append(side[done]); done += 1
    out += side[done:]
    return out

LDQ = " sc1"; STQ = " sc1"

LN_LDS = 0; SW_LDS = 16384
KC_LDS = 64; KC_CH = 16672; KC_OFF = (0, 4168, 8328, 12488)
UB_LDS = KC_LDS + 2 * KC_CH; UB_CH = 7680
XY_LDS = 49152; XY_W = 24576
G1_STATS = 114688
G2_HT = 65536
LDS_TOTAL = XY_LDS + 4 * XY_W

XSLOT = [0,1,2,3,4,5,6,7, 256,258,260,260, 260,262,264,264, 512,516,768,772, 516,520,772,776,
         1024,1280,1536,1792, 1032,1288,1544,1800]

def cmul(dst, a, b):
    return [f"v_pk_mul_f32 {V(dst,2)}, {V(a,2)}, {V(b,2)} op_sel:[0,0] op_sel_hi:[0,1]",
            f"v_pk_fma_f32 {V(dst,2)}, {V(a,2)}, {V(b,2)}, {V(dst,2)} op_sel:[1,1,0] op_sel_hi:[1,0,1] neg_lo:[1,0,0]"]

def arrive(k, base_sgpr_pair, voff_expr_sgpr):
    sk = k.newlabel("arr")
    k(f"s_cmp_lg_u32 s{S_WAVE}, 0"); k.branch(f"s_cbranch_scc1 {sk}")
    k(f"v_mov_b32 v4, s{voff_expr_sgpr}")
    k("v_mov_b32 v5, 1")
    k("s_mov_b64 exec, 1")
    k(f"global_atomic_add v4, v5, {S(base_sgpr_pair,2)}")
    k("s_mov_b64 exec, -1")
    k.label(sk)

def waitflag(k, base_sgpr_pair, nlanes, stride, soff_sgpr, target):
    sk = k.newlabel("wsk"); lp = k.newlabel("wlp"); ex = k.newlabel("wex")
    k.fence()
    k(f"s_cmp_lg_u32 s{S_WAVE}, 0"); k.branch(f"s_cbranch_scc1 {sk}")
    k(f"v_mul_u32_u24 v4, {stride}, v1")
    if soff_sgpr is not None: k(f"v_add_u32 v4, s{soff_sgpr}, v4")
    k(f"s_mov_b32 exec_lo, {hex((1 << nlanes) - 1)}"); k("s_mov_b32 exec_hi, 0")
    k(f"s_mov_b32 s{S_T}, 0")
    k.label(lp)
    k(f"global_load_dword v5, v4, {S(base_sgpr_pair,2)} sc1")
    k(f"s_add_u32 s{S_T}, s{S_T}, 1")
    k.wait_all()
    k(f"v_cmp_gt_u32 vcc, {target}, v5")
    k(f"s_cmp_ge_u32 s{S_T}, 400000"); k.branch(f"s_cbranch_scc1 {ex}")
    k.nop(4)
    k("s_cmp_eq_u64 vcc, 0"); k.branch(f"s_cbranch_scc0 {lp}")
    k.label(ex)
    k("s_mov_b64 exec, -1")
    k.label(sk)
    k.barrier()

def emit_ln_loads(k):
    X = 8; sT = S_T
    srd(k, SRD_A, S_U, L * D * 2)
    k(f"s_lshl_b32 s{sT}, s{S_WG}, 3")
    k(f"s_lshl_b32 s{sT+1}, s{S_WAVE}, 1")
    k(f"s_add_u32 s{sT+1}, s{sT}, s{sT+1}")
    k(f"s_mul_i32 s{sT+2}, s{sT+1}, 896")
    for i in range(8): k(f"v_mov_b32 v{X+i}, 0")
    k("s_mov_b32 exec_hi, 0x00ffffff")
    for i in range(2):
        k(f"buffer_load_dwordx4 {V(X+4*i,4)}, v{V_L16}, {S(SRD_A,4)}, s{sT+2} offen offset:{i*896}")
    k("s_mov_b32 exec_hi, -1")

def emit_ln(k):
    X = 8; XF = 16; OUT = 32; SUM = 48; T = 56; AW8 = 64; NR = 2
    sT = S_T
    k("v_and_b32 v4, 15, v1"); k("v_lshlrev_b32 v4, 1, v4"); k(f"v_xor_b32 v4, s{S_WAVE}, v4")
    k("v_lshlrev_b32 v5, 8, v1"); k(f"v_lshl_add_u32 v{AW8}, v4, 3, v5")
    for e in range(1, 8): k(f"v_xor_b32 v{AW8+e}, {32*e}, v{AW8}")
    k("v_and_b32 v4, 15, v0"); k("v_bfe_u32 v5, v0, 4, 4"); k("v_xor_b32 v4, v4, v5")
    k("v_lshrrev_b32 v5, 4, v0"); k("v_lshlrev_b32 v5, 8, v5"); k(f"v_lshl_add_u32 v{AW8+8}, v4, 4, v5")
    k("v_lshrrev_b32 v4, 1, v0"); k("v_lshlrev_b32 v4, 13, v4"); k("v_and_b32 v5, 1, v0"); k(f"v_lshl_add_u32 v{AW8+9}, v5, 4, v4")
    k(f"s_lshl_b32 s{sT+3}, s{S_WG}, 5"); k(f"s_add_u32 s{sT+3}, s{sT+3}, {WS_XU}")
    for i in range(NR):
        for e in range(4):
            k(f"v_lshlrev_b32 v{XF+8*i+2*e}, 16, v{X+4*i+e}")
            k(f"v_and_b32 v{XF+8*i+2*e+1}, 0xffff0000, v{X+4*i+e}")
    for i in range(NR):
        s_ = SUM + 4 * i; q = s_ + 2; x = XF + 8 * i
        k(f"v_pk_add_f32 {V(s_,2)}, {V(x,2)}, {V(x+2,2)}")
        k(f"v_pk_mul_f32 {V(q,2)}, {V(x,2)}, {V(x,2)}")
    for e in (1, 2, 3):
        for i in range(NR):
            s_ = SUM + 4 * i; q = s_ + 2; x = XF + 8 * i
            if e >= 2: k(f"v_pk_add_f32 {V(s_,2)}, {V(s_,2)}, {V(x+2*e,2)}")
            k(f"v_pk_fma_f32 {V(q,2)}, {V(x+2*e,2)}, {V(x+2*e,2)}, {V(q,2)}")
    for i in range(NR):
        s_ = SUM + 4 * i; q = s_ + 2
        k(f"v_add_f32 v{s_}, v{s_}, v{s_+1}"); k(f"v_add_f32 v{q}, v{q}, v{q+1}")
    regs = [SUM + 4 * i for i in range(NR)] + [SUM + 4 * i + 2 for i in range(NR)]
    for step in ("row_shr:1", "row_shr:2", "row_shr:4", "row_shr:8"):
        for r in regs: k(f"v_add_f32_dpp v{r}, v{r}, v{r} {step} row_mask:0xf bank_mask:0xf bound_ctrl:0")
    for r in regs: k(f"v_add_f32_dpp v{r}, v{r}, v{r} row_bcast:15 row_mask:0xa bank_mask:0xf")
    for r in regs: k(f"v_add_f32_dpp v{r}, v{r}, v{r} row_bcast:31 row_mask:0xc bank_mask:0xf")
    inv = f32bits(1.0 / 448.0); SM = sT + 8; eps = f32bits(1e-5)
    R4 = [(SUM + 4 * i, SUM + 4 * i + 2) for i in range(NR)]
    for s_, q in R4: k(f"v_mul_f32 v{s_}, {inv}, v{s_}"); k(f"v_mul_f32 v{q}, {inv}, v{q}")
    for s_, q in R4: k(f"v_fma_f32 v{q}, -v{s_}, v{s_}, v{q}")
    for s_, q in R4: k(f"v_cvt_pk_bf16_f32 v{s_+1}, v{s_}, v{q}")
    for s_, q in R4: k(f"v_lshlrev_b32 v{s_}, 16, v{s_+1}"); k(f"v_and_b32 v{q}, 0xffff0000, v{s_+1}")
    for s_, q in R4: k(f"v_add_f32 v{q}, {eps}, v{q}")
    for s_, q in R4: k(f"v_cvt_pk_bf16_f32 v{q}, v{q}, v{q}")
    for s_, q in R4: k(f"v_and_b32 v{q}, 0xffff0000, v{q}")
    for s_, q in R4: k(f"v_sqrt_f32 v{q}, v{q}")
    for s_, q in R4: k(f"v_cvt_pk_bf16_f32 v{q}, v{q}, v{q}")
    for s_, q in R4: k(f"v_and_b32 v{q}, 0xffff0000, v{q}")
    for s_, q in R4: k(f"v_rcp_f32 v{q}, v{q}")
    for i, (s_, q) in enumerate(R4):
        k(f"v_readlane_b32 s{SM+2*i}, v{s_}, 63"); k(f"v_readlane_b32 s{SM+2*i+1}, v{q}, 63")
    for e in range(4):
        for i in range(NR):
            x = XF + 8 * i + 2 * e; t = T + 4 * i; sp = S(SM + 2 * i, 2)
            k(f"v_pk_add_f32 {V(t,2)}, {V(x,2)}, {sp} op_sel:[0,0] op_sel_hi:[1,0] neg_lo:[0,1] neg_hi:[0,1]")
            k(f"v_cvt_pk_bf16_f32 v{t+2}, v{t}, v{t+1}")
            k(f"v_lshlrev_b32 v{t}, 16, v{t+2}")
            k(f"v_and_b32 v{t+1}, 0xffff0000, v{t+2}")
            k(f"v_pk_mul_f32 {V(t,2)}, {V(t,2)}, {sp} op_sel:[0,1] op_sel_hi:[1,1]")
            k(f"v_cvt_pk_bf16_f32 v{OUT+2*(2*e)+i}, v{x}, v{t}")
            k(f"v_cvt_pk_bf16_f32 v{OUT+2*(2*e+1)+i}, v{x+1}, v{t+1}")
        k("s_mov_b32 exec_hi, 0x00ffffff")
        for ee in (2 * e, 2 * e + 1):
            k(f"ds_write_b64 v{AW8+ee}, {V(OUT+2*ee,2)} offset:{LN_LDS}")
        k("s_mov_b32 exec_hi, -1")
    k.wait_lg(0); k.barrier()
    RD = 16
    for r in range(4):
        if r == 3: k("s_mov_b64 exec, 0") if False else None
        k(f"ds_read_b128 {V(RD+4*r,4)}, v{AW8+8} offset:{LN_LDS + r*4096}")
    for r in range(4):
        k(f"s_add_u32 s{sT+4}, s{sT+3}, {r*128*8192}")
        if r == 3:
            lab = k.newlabel("ln3")
            k(f"s_cmp_ge_u32 s{S_WAVE}, 2"); k.fence_lg = True
            k.wait_lg(0)
            k.branch(f"s_cbranch_scc1 {lab}")
            k(f"buffer_store_dwordx4 {V(RD+4*r,4)}, v{AW8+9}, {S(SRD_WS,4)}, s{sT+4} offen{STQ}")
            k.vmq.pop()
            k.label(lab)
        else:
            k(f"buffer_store_dwordx4 {V(RD+4*r,4)}, v{AW8+9}, {S(SRD_WS,4)}, s{sT+4} offen{STQ}")

HLD = 112
SWA = 224
def sw_setup(k, nunits_lds):
    t = S_T
    srd(k, SRD_B, S_W1, D * F * 2); srd(k, SRD_C, S_W3, D * F * 2); srd(k, SRD_D, S_W2, F * D * 2)
    k("v_lshrrev_b32 v4, 3, v1"); k("v_and_b32 v5, 7, v1"); k("v_lshlrev_b32 v6, 4, v5")
    k(f"s_movk_i32 s{t+6}, 3584"); k(f"v_mad_u32_u24 v{SWA}, v4, s{t+6}, v6")
    k(f"s_movk_i32 s{t+6}, 896"); k(f"v_mad_u32_u24 v{SWA+1}, v4, s{t+6}, v6")
    k(f"v_lshrrev_b32 v{SWA+2}, 2, v5"); k(f"v_mul_u32_u24 v{SWA+2}, 1088, v{SWA+2}"); k(f"v_lshl_add_u32 v{SWA+2}, v4, 6, v{SWA+2}")
    k("v_and_b32 v6, 3, v5"); k(f"v_lshl_add_u32 v{SWA+2}, v6, 4, v{SWA+2}")
    k(f"s_mul_i32 s{t+6}, s{S_WAVE}, {nunits_lds*2176}"); k(f"s_add_u32 s{t+6}, s{t+6}, {SW_LDS}")
    k(f"v_add_u32 v{SWA+2}, s{t+6}, v{SWA+2}")
    k("v_and_b32 v4, 15, v1"); k("v_lshrrev_b32 v4, 2, v4")
    k("v_bfe_u32 v6, v1, 4, 1"); k("v_lshlrev_b32 v6, 5, v6")
    k("v_and_b32 v5, 3, v1"); k("v_lshl_add_u32 v6, v5, 3, v6"); k("v_lshl_add_u32 v6, v4, 6, v6")
    k(f"v_add_u32 v6, s{t+6}, v6")
    k(f"v_lshl_add_u32 v{SWA+3}, v{V_HH}, 9, v6"); k(f"v_lshl_add_u32 v{SWA+4}, v{V_HH}, 8, v6")

def sw_units(k, nunits, rd_addr, rho_step, dst_fn, FR=80):
    for u in range(nunits):
        for i in range(2): k(f"ds_write_b128 v{SWA+2}, {V(HLD+8*u+4*i,4)} offset:{u*2176 + i*512}")
        f = FR + 8 * (u % 4)
        for e in range(2):
            for rho in range(2):
                k(f"ds_read_b64_tr_b16 {V(f+4*e+2*rho,2)}, v{rd_addr} offset:{u*2176 + e*1088 + rho*rho_step}")
        if u >= 1: dst_fn(u - 1, FR + 8 * ((u - 1) % 4))
    dst_fn(nunits - 1, FR + 8 * ((nunits - 1) % 4))

def w13_index(k, t, idx, sbase, dst_s, src_s):
    k(f"s_lshr_b32 s{t}, s{idx}, 1")
    k(f"s_mul_i32 s{t+1}, s{t}, 2341"); k(f"s_lshr_b32 s{t+1}, s{t+1}, 16")
    k(f"s_mul_i32 s{t+2}, s{t+1}, 28"); k(f"s_sub_u32 s{t+2}, s{t}, s{t+2}")
    if sbase: k(f"s_add_u32 s{t+1}, s{t+1}, {sbase}")
    k(f"s_mul_i32 s{src_s}, s{t+1}, {16*3584}"); k(f"s_lshl_b32 s{t}, s{t+2}, 7"); k(f"s_add_u32 s{src_s}, s{src_s}, s{t}")
    k(f"s_mul_i32 s{dst_s}, s{t+2}, 56"); k(f"s_add_u32 s{dst_s}, s{dst_s}, s{t+1}"); k(f"s_lshl_b32 s{dst_s}, s{dst_s}, 1")
    k(f"s_and_b32 s{t}, s{idx}, 1"); k(f"s_add_u32 s{dst_s}, s{dst_s}, s{t}"); k(f"s_lshl_b32 s{dst_s}, s{dst_s}, 10")
    k(f"s_add_u32 s{dst_s}, s{dst_s}, {WS_WA1}")

def w2_index(k, t, v, dst_s, src_s):
    k(f"s_mul_i32 s{t}, s{v}, 9363"); k(f"s_lshr_b32 s{t}, s{t}, 16")
    k(f"s_mul_i32 s{t+1}, s{t}, 7"); k(f"s_sub_u32 s{t+1}, s{v}, s{t+1}")
    k(f"s_mul_i32 s{src_s}, s{t}, {16*896}"); k(f"s_lshl_b32 s{t+2}, s{t+1}, 7"); k(f"s_add_u32 s{src_s}, s{src_s}, s{t+2}")
    k(f"s_mul_i32 s{dst_s}, s{t+1}, 112"); k(f"s_add_u32 s{dst_s}, s{dst_s}, s{t}")
    k(f"s_lshl_b32 s{dst_s}, s{dst_s}, 11"); k(f"s_add_u32 s{dst_s}, s{dst_s}, {WS_WA2}")

def unit_load(k, reg, vo, srdm, src_s, rowb, tmp):
    k(f"buffer_load_dwordx4 {V(reg,4)}, v{vo}, {S(srdm,4)}, s{src_s} offen")
    k(f"s_add_u32 s{tmp}, s{src_s}, {8*rowb}")
    k(f"buffer_load_dwordx4 {V(reg+4,4)}, v{vo}, {S(srdm,4)}, s{tmp} offen")

def unit_swizzle(k, reg, slot, w2order, f):
    for i in range(2): k(f"ds_write_b128 v{SWA+2}, {V(reg+4*i,4)} offset:{slot*2176 + i*512}")
    for e in range(2):
        for rho in range(2):
            k(f"ds_read_b64_tr_b16 {V(f+4*e+2*rho,2)}, v{SWA+4 if w2order else SWA+3} offset:{slot*2176 + e*1088 + rho*(512 if w2order else 256)}")

def unit_store(k, f, dst_s, estep, tmp):
    for e in range(2):
        k(f"s_add_u32 s{tmp}, s{dst_s}, {e*estep}")
        k(f"buffer_store_dwordx4 {V(f+4*e,4)}, v{V_L16}, {S(SRD_WS,4)}, s{tmp} offen{STQ}")

S_GW = 66; S_DA = 67; S_DB = 68
def sw_main_loads(k):
    t = S_T + 10
    k(f"s_lshl_b32 s{S_GW}, s{S_WG}, 2"); k(f"s_add_u32 s{S_GW}, s{S_GW}, s{S_WAVE}")
    k(f"s_and_b32 s{t}, s{S_GW}, 1"); k(f"s_cmp_eq_u32 s{t}, 0")
    k(f"s_cselect_b32 s{SRD_B}, s{SRD_B}, s{SRD_C}"); k(f"s_cselect_b32 s{SRD_B+1}, s{SRD_B+1}, s{SRD_C+1}")
    w13_index(k, t, S_GW, 0, S_DA, t + 3)
    unit_load(k, HLD, SWA, SRD_B, t + 3, 3584, t)
    lb = k.newlabel("ub"); le = k.newlabel("ube")
    q0 = list(k.vmq)
    k(f"s_cmp_ge_u32 s{S_GW}, 672"); k.branch(f"s_cbranch_scc1 {lb}")
    w13_index(k, t, S_GW, 16, S_DB, t + 3)
    unit_load(k, HLD + 8, SWA, SRD_B, t + 3, 3584, t)
    q1 = list(k.vmq)
    k.branch(f"s_branch {le}")
    k.label(lb)
    k.vmq = list(q0)
    k(f"s_sub_u32 s{S_P2}, s{S_GW}, 672")
    w2_index(k, t, S_P2, S_DB, t + 3)
    unit_load(k, HLD + 8, SWA + 1, SRD_D, t + 3, 896, t)
    assert len(k.vmq) == len(q1)
    k.label(le)
    k.vmq = q1

def sw_main_do(k):
    t = S_T + 10
    unit_swizzle(k, HLD, 0, False, 80)
    lb = k.newlabel("sb"); le = k.newlabel("sbe")
    k.I(f"v_mov_b32 v4, v{HLD+15}")
    q0 = list(k.vmq); l0 = list(k.lgq)
    k(f"s_cmp_ge_u32 s{S_GW}, 672"); k.branch(f"s_cbranch_scc1 {lb}")
    unit_swizzle(k, HLD + 8, 1, False, 88)
    unit_store(k, 80, S_DA, 28 * 2048, t)
    unit_store(k, 88, S_DB, 28 * 2048, t)
    k.wait_lg(0)
    q1 = list(k.vmq)
    k.branch(f"s_branch {le}")
    k.label(lb)
    k.vmq = list(q0); k.lgq = list(l0)
    unit_swizzle(k, HLD + 8, 1, True, 88)
    unit_store(k, 80, S_DA, 28 * 2048, t)
    unit_store(k, 88, S_DB, 1024, t)
    k.wait_lg(0)
    assert len(k.vmq) == len(q1)
    k.label(le)
    k.vmq = q1; k.lgq = []

def sw_help_index(k):
    k(f"s_sub_u32 s{S_P2}, s{S_WG}, {NWG}"); k(f"s_lshl_b32 s{S_P2}, s{S_P2}, 2"); k(f"s_add_u32 s{S_P2}, s{S_P2}, s{S_WAVE}")

def sw_help_loads(k):
    t = S_T + 10
    k(f"s_mul_i32 s{S_P1}, s{S_P2}, 5"); k(f"s_add_u32 s{S_P1}, s{S_P1}, 224")
    for j in range(5):
        w2_index(k, t, S_P1, 72 + j, t + 3)
        unit_load(k, HLD + 8 * j, SWA + 1, SRD_D, t + 3, 896, t)
        if j < 4: k(f"s_add_u32 s{S_P1}, s{S_P1}, 1")

def sw_help_do(k):
    t = S_T + 10
    for j in range(5):
        unit_swizzle(k, HLD + 8 * j, j, True, 152 + 8 * j)
    for j in range(5):
        unit_store(k, 152 + 8 * j, 72 + j, 1024, t)

def emit_helper_stats(k):
    sT = S_T; w = S_WAVE
    LD = 16; ACCS = 80; XF = 100
    k(f"s_sub_u32 s{sT+1}, s{S_WG}, {NWG}")
    k("v_lshrrev_b32 v4, 3, v1"); k("v_lshlrev_b32 v4, 12, v4"); k("v_and_b32 v5, 7, v1"); k("v_lshl_add_u32 v4, v5, 4, v4")
    k(f"s_mul_i32 s{sT+2}, s{w}, {112*4096}"); k(f"s_lshl_b32 s{sT+3}, s{sT+1}, 7"); k(f"s_add_u32 s{sT+2}, s{sT+2}, s{sT+3}")
    k(f"s_add_u32 s{sT+2}, s{sT+2}, {WS_HT}")
    for i in range(14):
        k(f"buffer_load_dwordx4 {V(LD+4*i,4)}, v4, {S(SRD_WS,4)}, s{sT+2} offen{LDQ}")
        if i < 13: k(f"s_add_u32 s{sT+2}, s{sT+2}, {8*4096}")
    for i in range(16): k(f"v_mov_b32 v{ACCS+i}, 0")
    for i in range(14):
        for e in range(4):
            k(f"v_lshlrev_b32 v{XF+2*e}, 16, v{LD+4*i+e}"); k(f"v_and_b32 v{XF+2*e+1}, 0xffff0000, v{LD+4*i+e}")
        for e in range(4):
            k(f"v_pk_add_f32 {V(ACCS+2*e,2)}, {V(ACCS+2*e,2)}, {V(XF+2*e,2)}")
            k(f"v_pk_fma_f32 {V(ACCS+8+2*e,2)}, {V(XF+2*e,2)}, {V(XF+2*e,2)}, {V(ACCS+8+2*e,2)}")
    k("v_lshrrev_b32 v5, 3, v1"); k(f"s_lshl_b32 s{sT+2}, s{w}, 3"); k(f"v_add_u32 v5, s{sT+2}, v5")
    k("v_and_b32 v6, 7, v1"); k(f"v_mul_u32_u24 v6, {8*33}, v6"); k("v_add_u32 v5, v5, v6"); k("v_lshlrev_b32 v5, 2, v5")
    for kind in range(2):
        for e in range(8):
            k(f"ds_write_b32 v5, v{ACCS+8*kind+e} offset:{(kind*64 + e)*33*4}")
    k.wait_lg(0); k.barrier()
    lab = k.newlabel("hs")
    k(f"s_cmp_ge_u32 s{w}, 2"); k.branch(f"s_cbranch_scc1 {lab}")
    k(f"v_mul_u32_u24 v5, {33*4}, v0")
    for i in range(32): k(f"ds_read_b32 v{LD+i}, v5 offset:{4*i}")
    for st in (16, 8, 4, 2, 1):
        for i in range(st): k(f"v_add_f32 v{LD+i}, v{LD+i}, v{LD+i+st}")
    k(f"v_lshlrev_b32 v6, 2, v0")
    k(f"ds_write_b32 v6, v{LD} offset:17408")
    k.wait_lg(0)
    k.label(lab)
    k.lgq = []; k.barrier()
    lab2 = k.newlabel("hs2")
    k(f"s_cmp_lg_u32 s{w}, 0"); k.branch(f"s_cbranch_scc1 {lab2}")
    k("v_lshlrev_b32 v6, 2, v1")
    k("ds_read_b32 v16, v6 offset:17408"); k("ds_read_b32 v17, v6 offset:17664")
    inv = f32bits(1.0 / 448.0)
    k(f"v_mul_f32 v16, {inv}, v16"); k(f"v_mul_f32 v17, {inv}, v17")
    k("v_fma_f32 v17, -v16, v16, v17")
    k("v_cvt_pk_bf16_f32 v18, v16, v17")
    k("v_lshlrev_b32 v20, 16, v18"); k("v_and_b32 v21, 0xffff0000, v18")
    k(f"v_add_f32 v21, {f32bits(1e-5)}, v21")
    k("v_cvt_pk_bf16_f32 v21, v21, v21"); k("v_and_b32 v21, 0xffff0000, v21")
    k("v_sqrt_f32 v21, v21")
    k("v_cvt_pk_bf16_f32 v21, v21, v21"); k("v_and_b32 v21, 0xffff0000, v21")
    k("v_lshlrev_b32 v6, 3, v1")
    k(f"s_lshl_b32 s{sT+2}, s{sT+1}, 9"); k(f"s_add_u32 s{sT+2}, s{sT+2}, {WS_ST}")
    k(f"buffer_store_dwordx2 {V(20,2)}, v6, {S(SRD_WS,4)}, s{sT+2} offen{STQ}")
    k("s_waitcnt vmcnt(0)")
    k(f"s_lshr_b32 s{sT+2}, s{sT+1}, 1"); k(f"s_lshl_b32 s{sT+2}, s{sT+2}, 7"); k(f"s_add_u32 s{sT+2}, s{sT+2}, {SYNC_ST}")
    k(f"v_mov_b32 v4, s{sT+2}"); k("v_mov_b32 v5, 1"); k("s_mov_b64 exec, 1")
    k(f"global_atomic_add v4, v5, {S(S_WS,2)}")
    k("s_mov_b64 exec, -1")
    k.label(lab2)
    k.vmq = []; k.lgq = []

AW = 48; AR = 56; ACC = 64; VAL = 96; PK = 160; FA = 176; E = 208; TMP = 224
XUA = 16; XUE = 32

def ssm_load_params(k):
    sT = S_T
    srd(k, SRD_A, S_LOGA, D * NM * 2); srd(k, SRD_B, S_AIM, D * NM * 2)
    srd(k, SRD_C, S_CRE, D * NM * 2); srd(k, SRD_D, S_CIM, D * NM * 2)
    k(f"s_lshl_b32 s{sT}, s{S_WG}, 10")
    k("v_lshlrev_b32 v4, 1, v0")
    for c in range(2):
        for i, sr in enumerate((SRD_A, SRD_B, SRD_C, SRD_D)):
            k(f"buffer_load_ushort v{PR+4*c+i}, v4, {S(sr,4)}, s{sT} offen offset:{c*512}")

def kgen_prologue(c):
    o = []; t = TMP
    log2e = f32bits(math.log2(math.e)); inv2pi = f32bits(1.0 / (2 * math.pi))
    E1, E2, E4, E8, E256, X0 = E, E + 2, E + 4, E + 6, E + 8, E + 10
    sT = S_T
    if c == 0: o.append(f"s_lshl_b32 s{sT+11}, s{S_LDT}, 16")
    else: o.append(f"s_and_b32 s{sT+11}, s{S_LDT}, 0xffff0000")
    o.append(f"v_mov_b32 v{t}, {log2e}")
    o.append(f"v_mul_f32 v{t}, s{sT+11}, v{t}")
    for i in range(4): o.append(f"v_lshlrev_b32 v{t+1+i}, 16, v{PR+4*c+i}")
    o.append(f"v_exp_f32 v{t}, v{t}")
    o.append(f"v_mul_f32 v{t+1}, {log2e}, v{t+1}")
    o.append(f"v_exp_f32 v{t+1}, v{t+1}")
    o.append(f"v_cvt_pk_bf16_f32 v{t}, v{t}, v{t}")
    o.append(f"v_and_b32 v{t}, 0xffff0000, v{t}")
    o.append(f"v_cvt_pk_bf16_f32 v{t+1}, v{t+1}, v{t+1}")
    o.append(f"v_and_b32 v{t+1}, 0xffff0000, v{t+1}")
    o.append(f"v_mul_f32 v{t+2}, v{t+2}, v{t}")
    o.append(f"v_mul_f32 v{t+1}, v{t+1}, v{t}")
    o.append(f"v_mul_f32 v{X0}, v{t+3}, v{t}")
    o.append(f"v_mul_f32 v{X0+1}, v{t+4}, v{t}")
    o.append(f"v_mul_f32 v{t+1}, {f32bits(-math.log2(math.e))}, v{t+1}")
    o.append(f"v_mul_f32 v{t+2}, {inv2pi}, v{t+2}")
    o.append(f"v_pk_add_f32 {V(X0,2)}, {V(X0,2)}, {V(X0,2)}")
    o.append(f"v_mul_f32 v{t+9}, {f32bits(256.0)}, v{t+1}")
    o.append(f"v_mul_f32 v{t+10}, {f32bits(256.0)}, v{t+2}")
    o.append(f"v_exp_f32 v{t+5}, v{t+1}")
    o.append(f"v_fract_f32 v{t+6}, v{t+2}")
    o.append(f"v_exp_f32 v{t+9}, v{t+9}")
    o.append(f"v_fract_f32 v{t+10}, v{t+10}")
    o.append(f"v_cos_f32 v{t+7}, v{t+6}")
    o.append(f"v_sin_f32 v{t+8}, v{t+6}")
    o.append(f"v_cos_f32 v{t+11}, v{t+10}")
    o.append(f"v_sin_f32 v{t+12}, v{t+10}")
    o.append(f"v_mul_f32 v{E1}, v{t+5}, v{t+7}")
    o.append(f"v_mul_f32 v{E1+1}, v{t+5}, v{t+8}")
    o.append(f"v_mul_f32 v{E256}, v{t+9}, v{t+11}")
    o.append(f"v_mul_f32 v{E256+1}, v{t+9}, v{t+12}")
    o += cmul(E2, E1, E1) + cmul(E4, E2, E2) + cmul(E8, E4, E4)
    return o

class WQ:
    def __init__(self, gap): self.q = []; self.gap = gap; self.cnt = 0; self.out = []
    def valu(self, ins):
        for l in ins:
            self.out.append(l); self.cnt += 1
            if self.q and self.cnt >= self.gap:
                self.out.append(self.q.pop(0)); self.cnt = 0
    def write(self, l): self.q.append(l)
    def flush(self):
        self.out += self.q; self.q = []

def kgen_x(wq, c):
    E1, E2, E4, E8, E256, X0 = E, E + 2, E + 4, E + 6, E + 8, E + 10
    loc = {0: X0}; nxt = [VAL]
    def new(a):
        r = nxt[0]; nxt[0] += 2; loc[a] = r; return r
    chunks = [[], [], [], []]
    for a in range(1, 8): chunks[0] += cmul(new(a), loc[a-1], E1)
    chunks[1] += cmul(new(256), X0, E256)
    chunks[1] += cmul(new(258), loc[256], E2) + cmul(new(260), loc[256], E4) + cmul(new(264), loc[256], E8)
    chunks[1] += cmul(new(262), loc[260], E2)
    chunks[2] += cmul(new(512), loc[256], E256) + cmul(new(516), loc[512], E4) + cmul(new(520), loc[512], E8)
    chunks[2] += cmul(new(768), loc[512], E256) + cmul(new(772), loc[768], E4) + cmul(new(776), loc[768], E8)
    prev = 768
    for b in (1024, 1280, 1536, 1792):
        chunks[3] += cmul(new(b), loc[prev], E256) + cmul(new(b + 8), loc[b], E8); prev = b
    xoff = 16384 if c else 0
    for j in range(4):
        wq.valu(chunks[j])
        p = PK + 8 * (j & 1)
        for i in range(4):
            a0, a1 = XSLOT[8*j+2*i], XSLOT[8*j+2*i+1]
            wq.valu([f"v_cvt_pk_bf16_f32 v{p+i}, v{loc[a0]}, v{loc[a1]}"])
        wq.write(f"ds_write_b128 v{AW+j}, {V(p,4)} offset:{xoff}")
        for i in range(4):
            a0, a1 = XSLOT[8*j+2*i], XSLOT[8*j+2*i+1]
            wq.valu([f"v_cvt_pk_bf16_f32 v{p+4+i}, -v{loc[a0]+1}, -v{loc[a1]+1}"])
        wq.write(f"ds_write_b128 v{AW+4+j}, {V(p+4,4)} offset:{xoff}")

def kgen_y(wq, c):
    E8 = E + 6; E16 = E + 12
    Y = lambda j: VAL + 2 * j
    wq.valu([f"v_mov_b32 v{Y(0)}, 1.0", f"v_mov_b32 v{Y(0)+1}, 0", f"v_mov_b32 v{Y(1)}, v{E8}", f"v_mov_b32 v{Y(1)+1}, v{E8+1}"])
    wq.valu(cmul(E16, E8, E8))
    wq.valu([f"v_mov_b32 v{Y(2)}, v{E16}", f"v_mov_b32 v{Y(2)+1}, v{E16+1}"])
    for j in range(4):
        for jj in range(max(3, 8 * j), 8 * j + 8): wq.valu(cmul(Y(jj), Y(jj - 2), E16))
        p = PK + 8 * (j & 1)
        for i in range(4): wq.valu([f"v_cvt_pk_bf16_f32 v{p+i}, v{Y(8*j+2*i)}, v{Y(8*j+2*i+1)}"])
        wq.write(f"ds_write_b128 v{AW+j}, {V(p,4)} offset:8192")
        for i in range(4): wq.valu([f"v_cvt_pk_bf16_f32 v{p+4+i}, v{Y(8*j+2*i)+1}, v{Y(8*j+2*i+1)+1}"])
        wq.write(f"ds_write_b128 v{AW+4+j}, {V(p+4,4)} offset:8192")

def kgen_mfma(c):
    o = []; xoff = 16384 if c else 0
    def rd(s):
        f = FA + 8 * (s % 4); r = []
        for rho in range(2):
            r.append(f"ds_read_b64_tr_b16 {V(f+2*rho,2)}, v{AR+rho} offset:{xoff+s*1024}")
            r.append(f"ds_read_b64_tr_b16 {V(f+4+2*rho,2)}, v{AR+rho} offset:{8192+s*1024}")
        return r
    for s in range(3): o += rd(s)
    for s in range(8):
        f = FA + 8 * (s % 4)
        if s + 3 < 8: o += rd(s + 3)
        cin = V(ACC + 16 * c, 16) if s else "0"
        o.append(f"v_mfma_f32_32x32x16_bf16 {V(ACC+16*c,16)}, {V(f,4)}, {V(f+4,4)}, {cin}")
    return o

def emit_kgen(k, mid_hook, mid_hook2):
    sT = S_T; w = S_WAVE
    for i in range(4): k(f"v_mov_b32 v{TMP+i}, 0")
    k("v_lshlrev_b32 v6, 4, v0")
    k("v_cmp_gt_u32 vcc, 160, v0")
    k(f"s_and_saveexec_b64 {S(sT+10,2)}, vcc")
    for c in range(2): k(f"ds_write_b128 v6, {V(TMP,4)} offset:{UB_LDS + c*UB_CH}")
    k(f"s_mov_b64 exec, {S(sT+10,2)}")
    k("v_and_b32 v6, 3, v0"); k("v_lshlrev_b32 v6, 4, v6")
    k("v_bfe_u32 v7, v0, 2, 2"); k(f"v_mul_u32_u24 v7, 4160, v7"); k("v_add_u32 v6, v6, v7")
    k("v_bfe_u32 v7, v0, 4, 1"); k(f"v_mul_u32_u24 v7, {KC_CH}, v7"); k("v_add_u32 v6, v6, v7")
    k("v_cmp_gt_u32 vcc, 32, v0")
    k(f"s_and_saveexec_b64 {S(sT+10,2)}, vcc")
    k(f"ds_write_b128 v6, {V(TMP,4)} offset:{KC_LDS}")
    k(f"s_mov_b64 exec, {S(sT+10,2)}")
    k(f"s_mul_i32 s{S_P0}, s{w}, {XY_W}"); k(f"s_add_u32 s{S_P0}, s{S_P0}, {XY_LDS}")
    k("v_and_b32 v6, 7, v1"); k("v_lshlrev_b32 v7, 7, v1"); k(f"v_add_u32 v7, s{S_P0}, v7")
    for j in range(8):
        k(f"v_xor_b32 v{AW+j}, {j}, v6"); k(f"v_lshl_add_u32 v{AW+j}, v{AW+j}, 4, v7")
    k("v_and_b32 v6, 15, v1"); k("v_lshrrev_b32 v6, 2, v6"); k("v_lshrrev_b32 v7, 1, v6")
    k(f"v_lshl_add_u32 v7, v{V_HH}, 2, v7")
    k("v_and_b32 v6, 1, v6"); k("v_lshlrev_b32 v6, 2, v6")
    k(f"v_bfe_u32 v{TMP+4}, v1, 4, 1"); k(f"v_lshl_add_u32 v6, v{TMP+4}, 1, v6")
    k(f"v_bfe_u32 v{TMP+4}, v1, 1, 1"); k(f"v_add_u32 v6, v6, v{TMP+4}")
    k(f"v_and_b32 v{TMP+4}, 1, v1"); k(f"v_lshlrev_b32 v{TMP+4}, 3, v{TMP+4}"); k(f"v_add_u32 v{TMP+4}, s{S_P0}, v{TMP+4}")
    for rho in range(2):
        k(f"v_add_u32 v{TMP+5}, {2*rho}, v7"); k(f"v_xor_b32 v{TMP+6}, v6, v{TMP+5}")
        k(f"v_lshl_add_u32 v{AR+rho}, v{TMP+6}, 4, v{TMP+4}"); k(f"v_lshl_add_u32 v{AR+rho}, v{TMP+5}, 7, v{AR+rho}")
    GAP = 13
    wq = WQ(GAP)
    wq.valu(kgen_prologue(0)); kgen_x(wq, 0)
    for l in wq.out: k(l)
    wq.out = []
    mid_hook()
    kgen_y(wq, 0)
    wq.valu(kgen_prologue(1))
    wq.flush()
    for l in wq.out: k(l)
    mid_hook2()
    wq = WQ(GAP); kgen_x(wq, 1); wq.flush()
    for l in spread(wq.out, kgen_mfma(0), start=0, end=len(wq.out) - 10): k(l)
    wq = WQ(GAP); kgen_y(wq, 1); wq.flush()
    for l in wq.out: k(l)
    for l in kgen_mfma(1): k(l)

def emit_kreduce(k):
    sT = S_T; w = S_WAVE
    k(f"v_add_u32 v7, s{S_P0}, v{V_L16}")
    for c in range(2):
        for q in range(4): k(f"ds_write_b128 v7, {V(ACC+16*c+4*q,4)} offset:{(c*4+q)*1024}")
    k(f"s_lshl_b32 s{sT+11}, s{w}, 10"); k(f"s_add_u32 s{sT+11}, s{sT+11}, {XY_LDS}")
    k(f"v_add_u32 v7, s{sT+11}, v{V_L16}")
    k(f"v_add_u32 v8, {2*XY_W}, v7")
    k("v_and_b32 v6, 31, v1"); k("v_lshlrev_b32 v6, 4, v6"); k(f"v_lshl_add_u32 v6, v{V_HH}, 3, v6")
    k.wait_lg(0); k.barrier()
    Q = VAL
    for c in range(2):
        for ww in range(4):
            k(f"ds_read_b128 {V(Q+16*c+4*ww,4)}, v{7 + (ww >> 1)} offset:{(ww & 1)*XY_W + c*4096}")
    for c in range(2):
        b = Q + 16 * c
        for i in (0, 2):
            k(f"v_pk_add_f32 {V(b+i,2)}, {V(b+i,2)}, {V(b+4+i,2)}")
            k(f"v_pk_add_f32 {V(b+8+i,2)}, {V(b+8+i,2)}, {V(b+12+i,2)}")
        for i in (0, 2): k(f"v_pk_add_f32 {V(b+i,2)}, {V(b+i,2)}, {V(b+8+i,2)}")
    save = (list(k.vmq), list(k.lgq))
    lab = [k.newlabel("seg") for _ in range(4)]; end = k.newlabel("segend")
    k(f"s_cmp_eq_u32 s{w}, 1"); k.branch(f"s_cbranch_scc1 {lab[1]}")
    k(f"s_cmp_eq_u32 s{w}, 2"); k.branch(f"s_cbranch_scc1 {lab[2]}")
    k(f"s_cmp_eq_u32 s{w}, 3"); k.branch(f"s_cbranch_scc1 {lab[3]}")
    P = TMP - 16
    def kaddr(c, lbase): return KC_LDS + c * KC_CH + 2 * (32 + lbase)
    def fin():
        k.wait_lg(0); k.branch(f"s_branch {end}")
    for c in range(2):
        b = Q + 16 * c
        k(f"v_cvt_pk_bf16_f32 v{P+2*c}, v{b}, v{b+1}"); k(f"v_cvt_pk_bf16_f32 v{P+2*c+1}, v{b+2}, v{b+3}")
        k(f"ds_write_b64 v6, {V(P+2*c,2)} offset:{kaddr(c,0)}")
    fin()
    k.label(lab[1])
    for c in range(2):
        b = Q + 16 * c
        k(f"v_cvt_pk_bf16_f32 v{P+2*c}, v{b}, v{b}"); k(f"v_cvt_pk_bf16_f32 v{P+2*c+1}, v{b+1}, v{b+2}")
        k(f"ds_write_b64 v6, {V(P+2*c,2)} offset:{kaddr(c,256)}")
    fin()
    k.label(lab[2])
    k("v_cmp_lt_u32 vcc, 31, v1")
    for c in range(2):
        b = Q + 16 * c
        for hlf in range(2):
            r0, r1 = b + 2 * hlf, b + 2 * hlf + 1; p = P + 4 * c + 2 * hlf
            k(f"v_cndmask_b32 v{P+8+hlf+2*c}, v{r0}, v{r1}, vcc")
            k(f"v_cvt_pk_bf16_f32 v{p}, v{r0}, v{r0}")
            k(f"v_cvt_pk_bf16_f32 v{p+1}, v{P+8+hlf+2*c}, v{r1}")
            k(f"ds_write_b64 v6, {V(p,2)} offset:{kaddr(c,512+256*hlf)}")
    fin()
    k.label(lab[3])
    for c in range(2):
        b = Q + 16 * c
        for q in range(4):
            p = P + 8 * c + 2 * q
            k(f"v_cvt_pk_bf16_f32 v{p}, v{b+q}, v{b+q}"); k(f"v_mov_b32 v{p+1}, v{p}")
            k(f"ds_write_b64 v6, {V(p,2)} offset:{kaddr(c,1024+256*q)}")
    k(f"s_mov_b32 exec_lo, 0x55555555"); k("s_mov_b32 exec_hi, 0")
    for c in range(2):
        for q in range(4):
            p = P + 8 * c + 2 * q
            k(f"ds_write_b16 v6, v{p} offset:{kaddr(c,1024+256*q)+8}")
    k("s_mov_b64 exec, -1")
    k.wait_lg(0)
    k.label(end)
    k.lgq = []
    k.barrier()
    k("v_lshlrev_b32 v6, 4, v0")
    W = VAL
    for c in range(2):
        base = KC_LDS + c * KC_CH
        k(f"ds_read_b64 {V(W+24*c,2)}, v6 offset:{base + 2*(8*3+4)}")
        k(f"ds_read_b128 {V(W+24*c+2,4)}, v6 offset:{base + 2*(8*3+8)}")
    for c in range(2):
        w0 = W + 24 * c; o = w0 + 8; m = w0 + 16; base = KC_LDS + c * KC_CH
        dst = lambda cp: base + KC_OFF[cp] + 2 * (8 * 3 + 4)
        for i in range(4): k(f"v_alignbit_b32 v{o+i}, v{w0+i+1}, v{w0+i}, 16")
        k(f"ds_write_b128 v6, {V(o,4)} offset:{dst(1)}")
        k(f"v_pk_mov_b32 {V(m,2)}, {V(w0,2)}, {V(w0+2,2)} op_sel:[1,0]")
        k(f"v_pk_mov_b32 {V(m+2,2)}, {V(w0+2,2)}, {V(w0+4,2)} op_sel:[1,0]")
        k(f"ds_write_b128 v6, {V(m,4)} offset:{dst(2)}")
        for i in range(4): k(f"v_alignbit_b32 v{o+4+i}, v{w0+i+2}, v{w0+i+1}, 16")
        k(f"ds_write_b128 v6, {V(o+4,4)} offset:{dst(3)}")

def emit_xu_loads(k):
    sT = S_T; g = S_WG; w = S_WAVE
    k(f"s_lshl_b32 s{sT+8}, s{g}, 14"); k(f"s_add_u32 s{sT+8}, s{sT+8}, {WS_XU}")
    k("v_lshlrev_b32 v4, 5, v0")
    for c in range(2):
        k(f"s_add_u32 s{sT+9}, s{sT+8}, {c*8192}")
        k(f"buffer_load_dwordx4 {V(XUA+8*c,4)}, v4, {S(SRD_WS,4)}, s{sT+9} offen{LDQ}")
        k(f"buffer_load_dwordx4 {V(XUA+8*c+4,4)}, v4, {S(SRD_WS,4)}, s{sT+9} offen offset:16{LDQ}")
    k(f"s_lshl_b32 s{sT+9}, s{w}, 12"); k(f"s_add_u32 s{sT+9}, s{sT+9}, s{sT+8}")
    k("v_and_b32 v4, 31, v1"); k("v_lshlrev_b32 v4, 7, v4"); k(f"v_lshl_add_u32 v4, v{V_HH}, 4, v4")
    for q in range(4):
        k(f"buffer_load_dwordx4 {V(XUE+4*q,4)}, v4, {S(SRD_WS,4)}, s{sT+9} offen offset:{32*q}{LDQ}")

def wa1_loads(f0, f1):
    o = [f"s_mul_i32 s{S_P1}, s{S_PHI}, 57344", f"s_add_u32 s{S_P1}, s{S_P1}, {WS_WA1 + f0*1024}"]
    for f in range(f0, f1):
        o.append(f"buffer_load_dwordx4 {A(4*f,4)}, v{V_L16}, {S(SRD_WS,4)}, s{S_P1} offen offset:{(f%4)*1024}{LDQ}")
        if f % 4 == 3: o.append(f"s_add_u32 s{S_P1}, s{S_P1}, 4096")
    return o

def emit_ub(k):
    sT = S_T
    k(f"s_mov_b32 s{sT+11}, 0x07060302")
    k("v_lshrrev_b32 v5, 2, v0"); k("v_mul_u32_u24 v5, 80, v5"); k("v_and_b32 v7, 3, v0"); k("v_lshl_add_u32 v5, v7, 4, v5")
    for c in range(2):
        for j in range(4):
            k(f"v_perm_b32 v{8+4*c+j}, v{XUA+8*c+6-2*j}, v{XUA+8*c+7-2*j}, s{sT+11}")
        k(f"ds_write_b128 v5, {V(8+4*c,4)} offset:{UB_LDS + c*UB_CH + 32*80}")

def emit_conv(k):
    sT = S_T; w = S_WAVE; g = S_WG
    FR = 96; AB, BB = 6, 7; T = TMP
    k(f"s_lshr_b32 s{sT+11}, s{w}, 1"); k(f"s_and_b32 s{sT+12}, s{w}, 1")
    k(f"v_and_b32 v{T}, 31, v1"); k(f"v_add_u32 v{T+1}, 1, v{T}"); k(f"v_and_b32 v{T+1}, 3, v{T+1}")
    k(f"v_add_u32 v{T+2}, 25, v{T}"); k(f"v_sub_u32 v{T+2}, v{T+2}, v{T+1}"); k(f"v_lshlrev_b32 v{T+2}, 1, v{T+2}")
    k(f"v_mul_u32_u24 v{T+3}, 4160, v{T+1}"); k(f"v_add_u32 v{T+2}, v{T+2}, v{T+3}")
    k(f"v_min_u32 v{T+3}, 1, v{T+1}"); k(f"v_lshl_add_u32 v{T+2}, v{T+3}, 3, v{T+2}")
    k(f"v_lshlrev_b32 v{T+3}, 4, v{V_HH}"); k(f"v_sub_u32 v{T+2}, v{T+2}, v{T+3}")
    k(f"s_mul_i32 s{sT+13}, s{sT+11}, {KC_CH}"); k(f"s_add_u32 s{sT+13}, s{sT+13}, {KC_LDS - 32}")
    k(f"s_lshl_b32 s{sT+14}, s{sT+12}, 10"); k(f"s_add_u32 s{sT+13}, s{sT+13}, s{sT+14}")
    k(f"v_add_u32 v{AB}, s{sT+13}, v{T+2}")
    k(f"v_mul_u32_u24 v{T+2}, 80, v{T}"); k(f"v_add_u32 v{T+2}, v{T+2}, v{T+3}")
    k(f"s_mul_i32 s{sT+13}, s{sT+11}, {UB_CH}"); k(f"s_add_u32 s{sT+13}, s{sT+13}, {UB_LDS}")
    k(f"s_mul_i32 s{sT+14}, s{sT+12}, {80*16}"); k(f"s_sub_u32 s{sT+13}, s{sT+13}, s{sT+14}")
    k(f"v_add_u32 v{BB}, s{sT+13}, v{T+2}")
    k.wait_lg(0)
    k(f"s_mov_b32 s{sT+1}, {DBG_W}")
    waitflag(k, S_DBGP, 8, 32, sT + 1, NTOT // 8)
    k.stamp(4)
    def loads(i, buf):
        f = FR + 32 * buf; o = []
        for kap in range(2):
            for (slot, dl) in ((0, i), (2, i + 32)):
                r = f + 4 * (slot + kap); off = 64 * dl + 32 * (1 - kap)
                o.append(f"ds_read_b64 {V(r,2)}, v{AB} offset:{off}")
                o.append(f"ds_read_b64 {V(r+2,2)}, v{AB} offset:{off+8}")
            for (slot, blk) in ((4, 32 - i), (6, 64 - i)):
                r = f + 4 * (slot + kap)
                o.append(f"ds_read_b128 {V(r,4)}, v{BB} offset:{80*blk + 32*kap}")
        a = o[0:6]; b = o[6:12]
        return [a[0], a[1], a[4], a[2], a[3], a[5], b[0], b[1], b[4], b[2], b[3], b[5]]
    def mfmas(i, buf):
        f = FR + 32 * buf; o = []
        fr = lambda slot, kap: V(f + 4 * (slot + kap), 4)
        for kap in range(2):
            c0 = V(ACC, 16) if (i or kap) else "0"
            c1 = V(ACC + 16, 16) if (i or kap) else "0"
            o.append(f"v_mfma_f32_32x32x16_bf16 {V(ACC,16)}, {fr(0,kap)}, {fr(4,kap)}, {c0}")
            o.append(f"v_mfma_f32_32x32x16_bf16 {V(ACC+16,16)}, {fr(2,kap)}, {fr(4,kap)}, {c1}")
            o.append(f"v_mfma_f32_32x32x16_bf16 {V(ACC+16,16)}, {fr(0,kap)}, {fr(6,kap)}, {V(ACC+16,16)}")
        return o
    main = list(loads(0, 0))
    for i in range(16):
        nl = loads(i + 1, (i + 1) & 1) if i < 15 else []
        for j, m in enumerate(mfmas(i, i & 1)):
            main.append(m)
            main += nl[2*j:2*j+2]
    for l in interleave(main, wa1_loads(0, 56), 0.62): k(l)
    k.stamp(5)
    k(f"s_lshl_b32 s{sT+13}, s{w}, 12"); k(f"s_add_u32 s{sT+13}, s{sT+13}, {XY_LDS}")
    k(f"v_add_u32 v7, s{sT+13}, v{V_L16}")
    k(f"s_xor_b32 s{sT+14}, s{w}, 1"); k(f"s_lshl_b32 s{sT+14}, s{sT+14}, 12"); k(f"s_add_u32 s{sT+14}, s{sT+14}, {XY_LDS}")
    k(f"v_add_u32 v6, s{sT+14}, v{V_L16}")
    lo = k.newlabel("par0"); e2 = k.newlabel("parend")
    k.nop(12)
    k(f"s_cmp_eq_u32 s{sT+12}, 0"); k.branch(f"s_cbranch_scc1 {lo}")
    for q in range(4): k(f"ds_write_b128 v7, {V(ACC+4*q,4)} offset:{q*1024}")
    for i in range(0, 16, 2): k(f"v_pk_mov_b32 {V(ACC+i,2)}, {V(ACC+16+i,2)}, {V(ACC+16+i,2)} op_sel:[0,1]")
    k.wait_lg(0); k.branch(f"s_branch {e2}")
    k.label(lo)
    for q in range(4): k(f"ds_write_b128 v7, {V(ACC+16+4*q,4)} offset:{q*1024}")
    k.wait_lg(0)
    k.label(e2)
    k.lgq = []
    k(f"s_lshl_b32 s{sT+14}, s{S_DS}, 16"); k(f"s_and_b32 s{sT+15}, s{S_DS}, 0xffff0000")
    k(f"s_cmp_eq_u32 s{sT+11}, 0"); k(f"s_cselect_b32 s{sT+14}, s{sT+14}, s{sT+15}")
    mask = sT + 16; k(f"s_mov_b32 s{mask}, 0xffff0000")
    DS2 = sT + 14
    assert DS2 % 2 == 0
    UD = 160; XF = 176
    for i in range(0, 16, 2):
        x0, x1 = XUE + i, XUE + i + 1
        k(f"v_and_b32 v{UD+i}, s{mask}, v{x0}"); k(f"v_and_b32 v{UD+i+1}, s{mask}, v{x1}")
        k(f"v_pk_mul_f32 {V(UD+i,2)}, {V(UD+i,2)}, {S(DS2,2)} op_sel_hi:[1,0]")
        k(f"v_cvt_pk_bf16_f32 v{T}, v{UD+i}, v{UD+i+1}")
        k(f"v_lshlrev_b32 v{UD+i}, 16, v{T}"); k(f"v_and_b32 v{UD+i+1}, s{mask}, v{T}")
        k(f"v_lshlrev_b32 v{XF+i}, 16, v{x0}"); k(f"v_lshlrev_b32 v{XF+i+1}, 16, v{x1}")
    k.barrier()
    Y = 96; H = 192
    for q in range(4): k(f"ds_read_b128 {V(Y+4*q,4)}, v6 offset:{q*1024}")
    for i in range(0, 16, 2):
        t = T + 4 * ((i // 2) % 2)
        k(f"v_pk_add_f32 {V(ACC+i,2)}, {V(ACC+i,2)}, {V(Y+i,2)}")
        k(f"v_cvt_pk_bf16_f32 v{t}, v{ACC+i}, v{ACC+i+1}")
        k(f"v_lshlrev_b32 v{t+2}, 16, v{t}"); k(f"v_and_b32 v{t+3}, s{mask}, v{t}")
        k(f"v_pk_add_f32 {V(t+2,2)}, {V(t+2,2)}, {V(UD+i,2)}")
        k(f"v_cvt_pk_bf16_f32 v{t}, v{t+2}, v{t+3}")
        k(f"v_lshlrev_b32 v{t+2}, 16, v{t}"); k(f"v_and_b32 v{t+3}, s{mask}, v{t}")
        k(f"v_pk_add_f32 {V(t+2,2)}, {V(t+2,2)}, {V(XF+i,2)}")
        k(f"v_cvt_pk_bf16_f32 v{H + i//2}, v{t+2}, v{t+3}")
    k(f"s_lshl_b32 s{sT+13}, s{g}, 13"); k(f"s_lshl_b32 s{sT+14}, s{w}, 11")
    k(f"s_add_u32 s{sT+13}, s{sT+13}, s{sT+14}"); k(f"s_add_u32 s{sT+13}, s{sT+13}, {WS_HT}")
    k("v_and_b32 v6, 31, v1"); k("v_lshlrev_b32 v6, 6, v6"); k(f"v_lshl_add_u32 v6, v{V_HH}, 4, v6")
    for p in range(2):
        k(f"v_permlane32_swap_b32 v{H+4*p}, v{H+4*p+2}")
        k(f"v_permlane32_swap_b32 v{H+4*p+1}, v{H+4*p+3}")
        k(f"buffer_store_dwordx4 {V(H+4*p,4)}, v6, {S(SRD_WS,4)}, s{sT+13} offen offset:{32*p}{STQ}")

G1_AD = 8; G1_DMA = 16; G1_ONE = 20; G1_BR = 24; G1_ST = 224; G1_OUT = (48, 56)
G1_ACC = 64; G1_CS = 192; G1_TMP = 240

def emit_decode(k):
    sT = S_T
    k(f"s_and_b32 s{sT}, s{S_WG}, 3"); k(f"s_bfe_u32 s{sT+1}, s{S_WG}, 0x10002")
    k(f"s_bfe_u32 s{sT+2}, s{S_WG}, 0x20003"); k(f"s_lshr_b32 s{sT+3}, s{S_WG}, 5")
    k(f"s_lshl_b32 s{S_TB}, s{sT}, 2"); k(f"s_add_u32 s{S_TB}, s{S_TB}, s{sT+2}")
    k(f"s_mul_i32 s{S_FB}, s{sT+1}, 7"); k(f"s_add_u32 s{S_FB}, s{S_FB}, s{sT+3}")
    k(f"s_lshl_b32 s{S_PHI}, s{S_FB}, 2"); k(f"s_add_u32 s{S_PHI}, s{S_PHI}, s{S_WAVE}")
    k(f"s_lshl_b32 s{S_TB2}, s{sT}, 3"); k(f"s_lshl_b32 s{sT+4}, s{sT+1}, 2")
    k(f"s_add_u32 s{S_TB2}, s{S_TB2}, s{sT+4}"); k(f"s_add_u32 s{S_TB2}, s{S_TB2}, s{sT+2}")
    k(f"s_mov_b32 s{S_DP}, s{sT+3}")

def emit_g1_pre(k):
    AD, ONE, CS, TMP = G1_AD, G1_ONE, G1_CS, G1_TMP
    for i in range(4): k(f"v_mov_b32 v{ONE+i}, 0x3f803f80")
    k("v_and_b32 v5, 15, v1"); k("v_lshrrev_b32 v5, 2, v5")
    k(f"v_lshl_add_u32 v7, v{V_HH}, 3, v5"); k("v_lshlrev_b32 v7, 8, v7")
    k(f"v_bfe_u32 v{TMP}, v1, 4, 1"); k(f"v_lshl_add_u32 v7, v{TMP}, 5, v7")
    k(f"v_and_b32 v{TMP}, 3, v1"); k(f"v_lshl_add_u32 v7, v{TMP}, 3, v7")
    for tau in range(4):
        k(f"v_xor_b32 v{TMP}, {tau}, v5"); k(f"v_lshl_add_u32 v{AD+tau}, v{TMP}, 6, v7")
        k(f"v_add_u32 v{AD+4+tau}, 0x10000, v{AD+tau}")
    k("v_lshrrev_b32 v6, 4, v1"); k("v_bfe_u32 v4, v1, 2, 2"); k("v_xor_b32 v4, v4, v6"); k("v_lshlrev_b32 v4, 6, v4")
    k("v_lshl_add_u32 v4, v6, 12, v4"); k("v_and_b32 v6, 3, v1"); k(f"v_lshl_add_u32 v{G1_DMA}, v6, 4, v4")

def emit_g1_cs(k):
    ONE, CS = G1_ONE, G1_CS
    for s in range(28):
        k(f"v_mfma_f32_32x32x16_bf16 {V(CS,16)}, {A(8*s,4)}, {V(ONE,4)}, {V(CS,16) if s else '0'}")
        k(f"v_mfma_f32_32x32x16_bf16 {V(CS+16,16)}, {A(8*s+4,4)}, {V(ONE,4)}, {V(CS+16,16) if s else '0'}")

def emit_gemm1(k):
    sT = S_T; w = S_WAVE
    AD, BR, ST, ACC1, CS, TMP = G1_AD, G1_BR, G1_ST, G1_ACC, G1_CS, G1_TMP
    S_HB, S_M0, S_WB, S_HH = sT + 8, sT + 9, sT + 10, sT + 12
    k(f"s_lshl_b32 s{S_HB}, s{w}, 14"); k(f"s_lshl_b32 s{sT+11}, s{S_TB}, 8")
    k(f"s_add_u32 s{S_HB}, s{S_HB}, s{sT+11}"); k(f"s_add_u32 s{S_HB}, s{S_HB}, {WS_HT}")
    k(f"s_lshl_b32 s{S_M0}, s{w}, 10")
    for s in range(28):
        k(f"s_mov_b32 m0, s{S_M0}")
        k(f"buffer_load_dwordx4 v{G1_DMA}, {S(SRD_WS,4)}, s{S_HB} offen{LDQ} lds", tag=("ch", s // 7))
        if s < 27:
            k(f"s_add_u32 s{S_M0}, s{S_M0}, 4096"); k(f"s_add_u32 s{S_HB}, s{S_HB}, 65536")
    emit_g1_cs(k)
    k(f"s_mul_i32 s{S_WB}, s{S_DP}, 112"); k(f"s_mul_i32 s{sT+11}, s{w}, 28")
    k(f"s_add_u32 s{S_WB}, s{S_WB}, s{sT+11}"); k(f"s_lshl_b32 s{S_WB}, s{S_WB}, 11"); k(f"s_add_u32 s{S_WB}, s{S_WB}, {WS_WA2}")
    k(f"s_lshl_b32 s{S_HH}, s{S_TB}, 2"); k(f"s_mul_i32 s{S_HH}, s{S_HH}, 112")
    k(f"s_lshl_b32 s{sT+11}, s{S_PHI}, 1"); k(f"s_add_u32 s{S_HH}, s{S_HH}, s{sT+11}")
    k(f"s_lshl_b32 s{S_HH}, s{S_HH}, 10"); k(f"s_add_u32 s{S_HH}, s{S_HH}, {WS_HH}")
    RB = 3
    def brd(s, tau):
        a = AD + tau + (4 if s >= 16 else 0); o = 4096 * (s % 16); dst = BR + 8 * (s % RB) + 4 * (tau & 1)
        return [f"ds_read_b64_tr_b16 {V(dst,2)}, v{a} offset:{o}", f"ds_read_b64_tr_b16 {V(dst+2,2)}, v{a} offset:{o+1024}"]
    def stats_prep(tau):
        st = ST + 4 * tau
        return [f"v_mul_f32 v{st+2}, v{st+1}, v{st+1}", f"v_rcp_f32 v{st+3}, v{st+1}",
                f"v_mul_f32 v{st+3}, {f32bits(-math.log2(math.e))}, v{st+3}"]
    def epilogue(tau, packed):
        o = []; G = ACC1 + 32 * tau; U = G + 16; st = ST + 4 * tau
        OUT = G1_OUT[tau & 1]
        o.append(f"s_add_u32 s{sT+13+(tau&1)}, s{S_HH}, {tau*112*1024}")
        for p in range(8):
            t = TMP + 4 * (p % 4); g0, u0 = G + 2 * p, U + 2 * p
            if packed:
                o.append(f"v_pk_fma_f32 {V(g0,2)}, {V(st,2)}, {V(CS+2*p,2)}, {V(g0,2)} op_sel_hi:[0,1,1] neg_lo:[1,0,0] neg_hi:[1,0,0]")
                o.append(f"v_pk_fma_f32 {V(u0,2)}, {V(st,2)}, {V(CS+16+2*p,2)}, {V(u0,2)} op_sel_hi:[0,1,1] neg_lo:[1,0,0] neg_hi:[1,0,0]")
                o.append(f"v_pk_mul_f32 {V(t,2)}, {V(g0,2)}, {V(st+2,2)} op_sel:[0,1] op_sel_hi:[1,1]")
                o.append(f"v_pk_mul_f32 {V(t+2,2)}, {V(g0,2)}, {V(u0,2)}")
                o.append(f"v_exp_f32 v{t}, v{t}"); o.append(f"v_exp_f32 v{t+1}, v{t+1}")
                o.append(f"v_pk_fma_f32 {V(t,2)}, {V(t,2)}, {V(st+2,2)}, {V(st+2,2)} op_sel_hi:[1,0,0]")
                o.append(f"v_rcp_f32 v{t}, v{t}"); o.append(f"v_rcp_f32 v{t+1}, v{t+1}")
                o.append(f"v_pk_mul_f32 {V(t+2,2)}, {V(t+2,2)}, {V(t,2)}")
            else:
                for h in range(2): o.append(f"v_fma_f32 v{g0+h}, -v{st}, v{CS+2*p+h}, v{g0+h}")
                for h in range(2): o.append(f"v_mul_f32 v{t+h}, v{g0+h}, v{st+3}")
                for h in range(2): o.append(f"v_fma_f32 v{u0+h}, -v{st}, v{CS+16+2*p+h}, v{u0+h}")
                for h in range(2): o.append(f"v_exp_f32 v{t+h}, v{t+h}")
                for h in range(2): o.append(f"v_mul_f32 v{t+2+h}, v{g0+h}, v{u0+h}")
                for h in range(2): o.append(f"v_fma_f32 v{t+h}, v{t+h}, v{st+2}, v{st+2}")
                for h in range(2): o.append(f"v_rcp_f32 v{t+h}, v{t+h}")
                for h in range(2): o.append(f"v_mul_f32 v{t+2+h}, v{t+2+h}, v{t+h}")
            o.append(f"v_cvt_pk_bf16_f32 v{OUT+p}, v{t+2}, v{t+3}")
            if p == 3: o.append(f"buffer_store_dwordx4 {V(OUT,4)}, v{V_L16}, {S(SRD_WS,4)}, s{sT+13+(tau&1)} offen{STQ}")
        o.append(f"buffer_store_dwordx4 {V(OUT+4,4)}, v{V_L16}, {S(SRD_WS,4)}, s{sT+13+(tau&1)} offen offset:1024{STQ}")
        return o
    def half(t0, s_lo, s_hi, wa2=False):
        main = []; PF = RB - 1
        for s in range(s_lo, min(s_lo + PF, s_hi)): main += brd(s, t0) + brd(s, t0 + 1)
        for s in range(s_lo, s_hi):
            nxt = (brd(s + PF, t0) + brd(s + PF, t0 + 1)) if s + PF < s_hi else []
            j = 0
            for tl in range(2):
                G = ACC1 + 32 * (t0 + tl); U = G + 16
                b = V(BR + 8 * (s % RB) + 4 * tl, 4)
                main.append(f"v_mfma_f32_32x32x16_bf16 {V(G,16)}, {A(8*s,4)}, {b}, {V(G,16) if s else '0'}")
                if nxt: main.append(nxt[j]); j += 1
                main.append(f"v_mfma_f32_32x32x16_bf16 {V(U,16)}, {A(8*s+4,4)}, {b}, {V(U,16) if s else '0'}")
                if nxt: main.append(nxt[j]); j += 1
            if wa2:
                for e in range(2):
                    f = 2 * s + e
                    main.append(f"buffer_load_dwordx4 {A(4*f,4)}, v{V_L16}, {S(SRD_WS,4)}, s{S_WB} offen offset:{(f%4)*1024}{LDQ}")
                    if f % 4 == 3: main.append(f"s_add_u32 s{S_WB}, s{S_WB}, 4096")
        return main
    for ch in range(4):
        k.wait_tag(("ch", ch)); k.barrier()
        if ch == 0: k.stamp(8)
        for l in half(0, 7 * ch, 7 * ch + 7): k(l)
    k.stamp(9)
    k(f"s_lshl_b32 s{sT+1}, s{S_TB}, 7"); k(f"s_add_u32 s{sT+1}, s{sT+1}, {SYNC_ST}")
    waitflag(k, S_WS, 1, 128, sT + 1, 2)
    k.stamp(10)
    k("v_and_b32 v4, 31, v1"); k("v_lshlrev_b32 v4, 3, v4")
    k(f"s_lshl_b32 s{sT+2}, s{S_TB}, 10"); k(f"s_add_u32 s{sT+2}, s{sT+2}, {WS_ST}")
    for tau in range(4):
        k(f"buffer_load_dwordx2 {V(ST+4*tau,2)}, v4, {S(SRD_WS,4)}, s{sT+2} offen offset:{tau*256}{LDQ}")
    side = stats_prep(0) + stats_prep(1) + stats_prep(2) + stats_prep(3) + epilogue(0, False) + epilogue(1, False)
    m2 = half(2, 0, 28, wa2=True)
    for l in interleave(m2, side, len(side) / 84.0, start=24): k(l)
    k.stamp(11)
    for l in epilogue(2, True) + epilogue(3, True): k(l)

def emit_g2_pre(k):
    sT = S_T; w = S_WAVE
    k("v_lshrrev_b32 v6, 3, v1"); k("v_bfe_u32 v4, v1, 2, 1"); k("v_bfe_u32 v5, v1, 4, 1")
    k("v_xor_b32 v4, v4, v5"); k("v_lshlrev_b32 v4, 6, v4"); k("v_lshl_add_u32 v4, v6, 12, v4")
    k("v_and_b32 v6, 3, v1"); k("v_lshl_add_u32 v4, v6, 4, v4")
    k(f"s_lshl_b32 s{sT+11}, s{S_DP}, 18"); k(f"s_lshl_b32 s{sT+12}, s{S_TB2}, 7"); k(f"s_add_u32 s{sT+11}, s{sT+11}, s{sT+12}")
    k(f"s_lshl_b32 s{sT+12}, s{w}, 16"); k(f"s_add_u32 s{sT+11}, s{sT+11}, s{sT+12}"); k(f"s_add_u32 s{sT+11}, s{sT+11}, {WS_HT}")
    k(f"s_lshl_b32 s{sT+12}, s{w}, 11"); k(f"s_add_u32 s{sT+12}, s{sT+12}, {G2_HT}")
    for i in range(2):
        k(f"s_mov_b32 m0, s{sT+12}")
        k(f"buffer_load_dwordx4 v4, {S(SRD_WS,4)}, s{sT+11} offen{LDQ} lds", tag="ht")
        if i == 0:
            k(f"s_add_u32 s{sT+11}, s{sT+11}, {8*4096}"); k(f"s_add_u32 s{sT+12}, s{sT+12}, 1024")

def emit_gemm2(k):
    sT = S_T; w = S_WAVE
    srd(k, SRD_A, S_OUT, L * D * 2)
    RING = 20; BR = 32; ACC2 = 192; TMP = 8
    S_B0, S_B1 = sT + 8, sT + 9
    k(f"s_mul_i32 s{sT+10}, s{w}, 28")
    k(f"s_mul_i32 s{S_B0}, s{S_TB2}, 224"); k(f"s_add_u32 s{S_B0}, s{S_B0}, s{sT+10}")
    k(f"s_lshl_b32 s{S_B0}, s{S_B0}, 10"); k(f"s_add_u32 s{S_B0}, s{S_B0}, {WS_HH}")
    k(f"s_add_u32 s{S_B1}, s{S_B0}, {112*1024}")
    def loadB(i):
        r = BR + 8 * (i % RING)
        k(f"buffer_load_dwordx4 {V(r,4)}, v{V_L16}, {S(SRD_WS,4)}, s{S_B0} offen offset:{(i%4)*1024}{LDQ}")
        k(f"buffer_load_dwordx4 {V(r+4,4)}, v{V_L16}, {S(SRD_WS,4)}, s{S_B1} offen offset:{(i%4)*1024}{LDQ}")
        if i % 4 == 3:
            k(f"s_add_u32 s{S_B0}, s{S_B0}, 4096"); k(f"s_add_u32 s{S_B1}, s{S_B1}, 4096")
    for i in range(RING): loadB(i)
    for i in range(28):
        r = BR + 8 * (i % RING)
        for mu in range(2):
            for nu in range(2):
                acc = V(ACC2 + 16 * (2 * mu + nu), 16)
                k(f"v_mfma_f32_32x32x16_bf16 {acc}, {A(8*i+4*mu,4)}, {V(r+4*nu,4)}, {acc if i else '0'}")
        if i + RING < 28: loadB(i + RING)
    k.stamp(14)
    k(f"s_lshl_b32 s{sT+11}, s{w}, 14"); k(f"v_add_u32 v4, s{sT+11}, v{V_L16}")
    for tl in range(4):
        for q in range(4):
            k(f"ds_write_b128 v4, {V(ACC2+16*tl+4*q,4)} offset:{tl*4096+q*1024}")
    k(f"s_lshr_b32 s{sT+12}, s{w}, 1"); k(f"s_and_b32 s{sT+13}, s{w}, 1")
    k("v_and_b32 v4, 15, v1"); k("v_lshrrev_b32 v4, 2, v4")
    k(f"v_lshl_add_u32 v6, v{V_HH}, 2, v4"); k("v_lshlrev_b32 v6, 7, v6")
    k("v_lshrrev_b32 v7, 1, v4"); k(f"v_xor_b32 v7, s{sT+13}, v7"); k("v_lshl_add_u32 v6, v7, 6, v6")
    k("v_bfe_u32 v7, v1, 4, 1"); k("v_lshl_add_u32 v6, v7, 5, v6")
    k("v_and_b32 v7, 3, v1"); k("v_lshl_add_u32 v6, v7, 3, v6")
    k(f"s_lshl_b32 s{sT+14}, s{sT+12}, 12"); k(f"s_add_u32 s{sT+14}, s{sT+14}, {G2_HT}"); k(f"v_add_u32 v6, s{sT+14}, v6")
    k(f"s_lshl_b32 s{sT+11}, s{w}, 12"); k(f"v_add_u32 v5, s{sT+11}, v{V_L16}")
    k("v_and_b32 v7, 31, v1"); k(f"s_movk_i32 s{sT+14}, 896"); k(f"v_mul_u32_u24 v7, s{sT+14}, v7"); k(f"v_lshl_add_u32 v7, v{V_HH}, 4, v7")
    k(f"s_lshl_b32 s{sT+14}, s{S_TB2}, 1"); k(f"s_add_u32 s{sT+14}, s{sT+14}, s{sT+13}"); k(f"s_mul_i32 s{sT+14}, s{sT+14}, {32*896}")
    k(f"s_lshl_b32 s{sT+15}, s{S_DP}, 7"); k(f"s_add_u32 s{sT+14}, s{sT+14}, s{sT+15}")
    k(f"s_lshl_b32 s{sT+15}, s{sT+12}, 6"); k(f"s_add_u32 s{sT+14}, s{sT+14}, s{sT+15}")
    k.wait_all(); k.barrier()
    P = BR; HV = BR + 64; O = BR + 80
    for q in range(4): k(f"ds_read_b64_tr_b16 {V(HV+2*q,2)}, v6 offset:{q*1024}")
    for q in range(4):
        for ww in range(4): k(f"ds_read_b128 {V(P+16*ww+4*q,4)}, v5 offset:{ww*16384+q*1024}")
    for i in range(0, 16, 2):
        t = TMP + 4 * ((i // 2) % 2); hv = HV + i // 2
        k(f"v_pk_add_f32 {V(P+i,2)}, {V(P+i,2)}, {V(P+16+i,2)}")
        k(f"v_pk_add_f32 {V(P+32+i,2)}, {V(P+32+i,2)}, {V(P+48+i,2)}")
        k(f"v_pk_add_f32 {V(P+i,2)}, {V(P+i,2)}, {V(P+32+i,2)}")
        k(f"v_cvt_pk_bf16_f32 v{t}, v{P+i}, v{P+i+1}")
        k(f"v_lshlrev_b32 v{t+2}, 16, v{t}"); k(f"v_and_b32 v{t+3}, 0xffff0000, v{t}")
        k(f"v_lshlrev_b32 v{t}, 16, v{hv}"); k(f"v_and_b32 v{t+1}, 0xffff0000, v{hv}")
        k(f"v_pk_add_f32 {V(t,2)}, {V(t,2)}, {V(t+2,2)}")
        k(f"v_cvt_pk_bf16_f32 v{O+i//2}, v{t}, v{t+1}")
        if i in (6, 14):
            p = i // 8
            k(f"v_permlane32_swap_b32 v{O+4*p}, v{O+4*p+2}"); k(f"v_permlane32_swap_b32 v{O+4*p+1}, v{O+4*p+3}")
            k(f"buffer_store_dwordx4 {V(O+4*p,4)}, v7, {S(SRD_A,4)}, s{sT+14} offen offset:{32*p}")

DBGSEL = [1, 2, 3, 17, 4, 5, 7, 8, 11, 12, 14, 16]
def dump_stamps(k):
    if not getattr(k, "prof", False): return
    n = k.nstamp
    lab = k.newlabel("nodbg")
    k(f"s_cmp_lg_u32 s{S_WG}, 100"); k.branch(f"s_cbranch_scc1 {lab}")
    k(f"s_cmp_lg_u32 s{S_WAVE}, 0"); k.branch(f"s_cbranch_scc1 {lab}")
    k("s_mov_b64 exec, 1")
    for i, sidx in enumerate(DBGSEL):
        dw = (2 + i) if i < 6 else (10 + i - 6)
        k(f"s_sub_u32 s{S_T}, s{80+sidx}, s80")
        k(f"v_mov_b32 v4, {4*dw}"); k(f"v_mov_b32 v5, s{S_T}")
        k(f"global_store_dword v4, v5, {S(S_DBGP,2)}")
    k("s_mov_b64 exec, -1")
    k.label(lab)
    k(f"s_mul_i32 s{S_T}, s{S_WG}, 4"); k(f"s_add_u32 s{S_T}, s{S_T}, s{S_WAVE}")
    k(f"s_lshl_b32 s{S_T}, s{S_T}, 7"); k(f"s_add_u32 s{S_T}, s{S_T}, {WS_DBG + 0x100000}")
    k("v_mov_b32 v4, 0")
    for i in range(n):
        k(f"v_mov_b32 v{8+i}, s{80+i}")
    for i in range(n):
        k(f"buffer_store_dword v{8+i}, v4, {S(SRD_WS,4)}, s{S_T} offen offset:{4*i}")

STV = 250

def fused_kernel(name, prof=False):
    k = Kern(name); k.prof = prof
    done = name + "_done"
    k.stamp(0)
    k(f"s_cmp_ge_u32 s{S_WG}, {NTOT}"); k.branch(f"s_cbranch_scc1 {done}")
    k("s_load_dwordx16 s[4:19], s[0:1], 0"); k("s_load_dwordx8 s[20:27], s[0:1], 64"); k("s_load_dwordx4 s[28:31], s[0:1], 96")
    k("v_lshrrev_b32 v1, 6, v0"); k(f"v_readfirstlane_b32 s{S_WAVE}, v1"); k("v_and_b32 v1, 63, v0")
    k(f"v_lshlrev_b32 v{V_L16}, 4, v1"); k(f"v_lshrrev_b32 v{V_HH}, 5, v1")
    emit_decode(k)
    k.smem_wait()
    srd(k, SRD_WS, S_WS, WS_END)
    sT = S_T
    helper = k.newlabel("helper")
    emit_ln_loads(k)
    k(f"s_cmp_ge_u32 s{S_WG}, {NWG}"); k.branch(f"s_cbranch_scc1 {helper}")
    q_ln = list(k.vmq)
    k(f"s_lshl_b32 s{sT+1}, s{S_WG}, 2")
    k(f"s_add_u32 s{sT+2}, s{S_LOGDT}, s{sT+1}"); k(f"s_addc_u32 s{sT+3}, s{S_LOGDT+1}, 0")
    k(f"s_load_dword s{S_LDT}, {S(sT+2,2)}, 0")
    k(f"s_add_u32 s{sT+4}, s{S_DSK}, s{sT+1}"); k(f"s_addc_u32 s{sT+5}, s{S_DSK+1}, 0")
    k(f"s_load_dword s{S_DS}, {S(sT+4,2)}, 0")
    sw_setup(k, 2)
    sw_main_loads(k)
    ssm_load_params(k)
    k.smem_wait()
    emit_ln(k)
    sw_main_do(k)
    k.wait_lg(0)
    k.stamp(1)
    k.barrier()
    k.vmq = []
    def mid():
        k("s_waitcnt vmcnt(4)")
        k.stamp(2)
        k.barrier()
        k(f"s_and_b32 s{sT}, s{S_WG}, 7"); k(f"s_lshl_b32 s{sT}, s{sT}, 5")
        arrive(k, S_DBGP, sT)
    def mid2():
        k("s_waitcnt vmcnt(0)")
        k.barrier()
        k(f"s_and_b32 s{sT}, s{S_WG}, 7"); k(f"s_lshl_b32 s{sT}, s{sT}, 5"); k(f"s_add_u32 s{sT}, s{sT}, {DBG_W}")
        arrive(k, S_DBGP, sT)
    emit_kgen(k, mid, mid2)
    k.stamp(3)
    waitflag(k, S_DBGP, 8, 32, None, NTOT // 8)
    k.stamp(17)
    emit_xu_loads(k)
    emit_kreduce(k)
    emit_ub(k)
    emit_conv(k)
    k.stamp(6)
    k.wait_vm(0); k.barrier()
    k(f"s_and_b32 s{sT}, s{S_WG}, 31"); k(f"s_lshl_b32 s{sT}, s{sT}, 7"); k(f"s_add_u32 s{sT}, s{sT}, {SYNC_B2}")
    arrive(k, S_WS, sT)
    emit_g1_pre(k)
    k(f"s_mov_b32 s{sT+1}, {SYNC_B2}")
    waitflag(k, S_WS, 32, 128, sT + 1, 7)
    k.stamp(7)
    emit_gemm1(k)
    k.stamp(13)
    k.wait_vm(0); k.barrier()
    k(f"s_lshl_b32 s{sT}, s{S_TB}, 7"); k(f"s_add_u32 s{sT}, s{sT}, {SYNC_B3}")
    arrive(k, S_WS, sT)
    emit_g2_pre(k)
    k(f"s_lshr_b32 s{sT+1}, s{S_TB2}, 1"); k(f"s_lshl_b32 s{sT+1}, s{sT+1}, 7"); k(f"s_add_u32 s{sT+1}, s{sT+1}, {SYNC_B3}")
    waitflag(k, S_WS, 1, 128, sT + 1, 14)
    k.stamp(12)
    emit_gemm2(k)
    k.stamp(15)
    if prof:
        k.wait_all(); k.stamp(16)
    dump_stamps(k)
    k.branch(f"s_branch {done}")
    k.label(helper)
    k.vmq = q_ln; k.lgq = []
    nosw = k.newlabel("nosw"); nosw2 = k.newlabel("nosw2")
    sw_setup(k, 5)
    sw_help_index(k)
    join = k.newlabel("join")
    k(f"s_cmp_ge_u32 s{S_P2}, 112"); k.branch(f"s_cbranch_scc1 {nosw}")
    sw_help_loads(k)
    k("s_waitcnt vmcnt(10)")
    k.branch(f"s_branch {join}")
    k.label(nosw)
    skip3 = k.newlabel("nozero")
    k(f"s_cmp_lg_u32 s{S_WG}, {NTOT-1}"); k.branch(f"s_cbranch_scc1 {skip3}")
    for i in range(4): k(f"v_mov_b32 v{80+i}, 0")
    k(f"s_lshl_b32 s{sT+6}, s{S_WAVE}, 11"); k(f"s_add_u32 s{sT+6}, s{sT+6}, {WS_SYNC}")
    for i in range(2): k(f"buffer_store_dwordx4 {V(80,4)}, v{V_L16}, {S(SRD_WS,4)}, s{sT+6} offen offset:{i*1024}{STQ}")
    k.label(skip3)
    k("s_waitcnt vmcnt(0)")
    k.label(join)
    k.vmq = []
    k.stamp(1)
    emit_ln(k)
    k("s_waitcnt vmcnt(0)"); k.vmq = []; k.barrier()
    k(f"s_and_b32 s{sT}, s{S_WG}, 7"); k(f"s_lshl_b32 s{sT}, s{sT}, 5")
    arrive(k, S_DBGP, sT)
    k.stamp(2)
    k(f"s_cmp_ge_u32 s{S_P2}, 112"); k.branch(f"s_cbranch_scc1 {nosw2}")
    sw_help_do(k)
    k.label(nosw2)
    k("s_waitcnt vmcnt(0) lgkmcnt(0)"); k.vmq = []; k.lgq = []
    k.barrier()
    k.stamp(3)
    k(f"s_and_b32 s{sT}, s{S_WG}, 7"); k(f"s_lshl_b32 s{sT}, s{sT}, 5"); k(f"s_add_u32 s{sT}, s{sT}, {DBG_W}")
    arrive(k, S_DBGP, sT)
    k.stamp(4)
    k(f"s_mov_b32 s{sT+1}, {SYNC_B2}")
    waitflag(k, S_DBGP, 8, 32, None, NTOT // 8)
    k(f"s_mov_b32 s{sT+1}, {SYNC_B2}")
    waitflag(k, S_WS, 32, 128, sT + 1, 7)
    k.stamp(7)
    emit_helper_stats(k)
    k.stamp(9)
    if prof:
        for i in (5, 6, 8, 10, 11, 12, 13, 14, 15, 16, 17, 18): k(f"s_mov_b32 s{80+i}, s80")
    dump_stamps(k)
    k.label(done)
    k("s_endpgm")
    return k

NAME = "sequential_preLN__ssm_conv_s4d__glu_gated_swiglu__prompt_kernel"
def build(out, prof=False, single=False):
    hdr = open('sequential_preLN__ssm_conv_s4d__glu_gated_swiglu__prompt.s.ref').read().split("; Override launch")[0].rstrip("\n").split("\n")
    k = fused_kernel(NAME, prof)
    txt = build_file(hdr, [(NAME, NTOT, 256, LDS_TOTAL)], [(k, 512, 256, 102)], single=single)
    open(out, "w").write(txt)
    print(NAME, "instructions", k.count(), "maxv", k.maxv, "maxa", k.maxa, "maxs", k.maxs)

if __name__ == "__main__":
    build(sys.argv[1], "prof" in sys.argv[2:], "single" in sys.argv[2:])
```

```python
import sys
sys.path.insert(0, 'gen')
from fused import *
def gen(mode, nw):
    k = Kern("cold_kernel"); k.prof = True
    k.stamp(0)
    k(f"s_cmp_ge_u32 s{S_WG}, 256"); k.branch(f"s_cbranch_scc1 cold_done")
    k("s_load_dwordx16 s[4:19], s[0:1], 0"); k("s_load_dwordx8 s[20:27], s[0:1], 64"); k("s_load_dwordx4 s[28:31], s[0:1], 96")
    k("v_lshrrev_b32 v1, 6, v0"); k(f"v_readfirstlane_b32 s{S_WAVE}, v1"); k("v_and_b32 v1, 63, v0")
    k(f"v_lshlrev_b32 v{V_L16}, 4, v1")
    k.smem_wait()
    srd(k, SRD_WS, S_WS, WS_END)
    k.stamp(1)
    k(f"s_lshl_b32 s{S_T}, s{S_WG}, 2"); k(f"s_add_u32 s{S_T}, s{S_T}, s{S_WAVE}")
    srd(k, SRD_A, S_U, L*D*2)
    k(f"s_mul_i32 s{S_T+1}, s{S_T}, 1792")
    for i in range(2): k(f"buffer_load_dwordx4 {V(8+4*i,4)}, v{V_L16}, {S(SRD_A,4)}, s{S_T+1} offen offset:{896*i}")
    srd(k, SRD_B, S_W1, D*F*2); srd(k, SRD_C, S_W3, D*F*2); srd(k, SRD_D, S_W2, D*F*2)
    srds = [SRD_B, SRD_C, SRD_D]
    if mode == "lin":
        for i in range(nw):
            k(f"s_mul_i32 s{S_T+1}, s{S_T}, {1024*((nw+2)//3)}"); k(f"s_add_u32 s{S_T+1}, s{S_T+1}, {1024*(i//3)}")
            k(f"buffer_load_dwordx4 {V(16+4*i,4)}, v{V_L16}, {S(srds[i%3],4)}, s{S_T+1} offen")
    else:
        k("v_lshrrev_b32 v4, 3, v1"); k("v_and_b32 v5, 7, v1"); k("v_lshlrev_b32 v5, 4, v5")
        k(f"s_movk_i32 s{S_T+2}, 3584"); k(f"v_mad_u32_u24 v4, v4, s{S_T+2}, v5")
        for i in range(nw):
            k(f"s_mul_i32 s{S_T+1}, s{S_T}, {(nw+2)//3}"); k(f"s_add_u32 s{S_T+1}, s{S_T+1}, {i//3}")
            if mode == "tile":
                k(f"s_mul_i32 s{S_T+2}, s{S_T+1}, 2341"); k(f"s_lshr_b32 s{S_T+2}, s{S_T+2}, 16")
                k(f"s_mul_i32 s{S_T+3}, s{S_T+2}, 28"); k(f"s_sub_u32 s{S_T+3}, s{S_T+1}, s{S_T+3}")
                k(f"s_mul_i32 s{S_T+2}, s{S_T+2}, {8*3584}"); k(f"s_lshl_b32 s{S_T+3}, s{S_T+3}, 7"); k(f"s_add_u32 s{S_T+2}, s{S_T+2}, s{S_T+3}")
            k(f"buffer_load_dwordx4 {V(16+4*i,4)}, v4, {S(srds[i%3],4)}, s{S_T+2} offen")
    k.stamp(2)
    k(f"s_waitcnt vmcnt({nw})"); k.stamp(3)
    k("s_waitcnt vmcnt(0)"); k.stamp(4)
    k.vmq = []
    dump_stamps(k)
    k.label("cold_done"); k("s_endpgm")
    return k
for mode in ("lin", "tile"):
    for nw in (4, 5):
        kk = gen(mode, nw)
        open(f"cold2_{mode}_{nw}.s","w").write(build_file([], [("cold_kernel",256,256,1024)], [(kk,128,128,102)]))
```
